```python
import torch

def _softmax(x, axis=-1):
    return torch.softmax(x, dim=axis)
def _gelu(x):
    return torch.nn.functional.gelu(x, approximate="tanh")
def _silu(x):
    return torch.nn.functional.silu(x)
def _sigmoid(x):
    return torch.sigmoid(x)
def _layernorm(x, axis=-1, eps=1e-5):
    m = x.mean(dim=axis, keepdim=True)
    v = x.var(dim=axis, keepdim=True, unbiased=False)
    return (x - m) / torch.sqrt(v + eps)
def _scatter_add(tgt, idx, src, axis=0):
    return tgt.clone().index_add_(axis, idx, src)
def _segment_sum(src, seg, n):
    out = torch.zeros((n,) + src.shape[1:], dtype=src.dtype)
    return out.index_add_(0, seg, src)
def _pad(x, pw):
    flat = tuple(v for pair in reversed(pw) for v in pair)
    return torch.nn.functional.pad(x, flat)

kernel_name = 'interleave_layers__sliding_block__mha_block__prompt'

def setup_inputs():

    _w = (lambda a: (lambda t: t.to(torch.bfloat16) if t.is_floating_point() else t)(torch.as_tensor(a)))
    def _A_setup():
        B, S, D = 1, 2048, 640
        return {
            "x": _w((lambda *s: torch.randn(*s, dtype=torch.bfloat16) * 0.05)(B, S, D)),
            "wqkv": _w((lambda *s: torch.randn(*s, dtype=torch.bfloat16) * 0.05)(D, 3 * D)),
            "wo": _w((lambda *s: torch.randn(*s, dtype=torch.bfloat16) * 0.05)(D, D)),
        }
    _A_in = _A_setup()

    def _B_setup():
        B, S, D, H = 1, 2048, 640, 32
        return {
            "x": _w((lambda *s: torch.randn(*s, dtype=torch.bfloat16) * 0.05)(B, S, D)),
            "wqkv": _w((lambda *s: torch.randn(*s, dtype=torch.bfloat16) * 0.05)(D, 3 * D)),
            "wo": _w((lambda *s: torch.randn(*s, dtype=torch.bfloat16) * 0.05)(D, D)),
        }
    _B_in = _B_setup()

    return {
        "A_x": _A_in["x"],
        "A_wqkv": _A_in["wqkv"],
        "A_wo": _A_in["wo"],
        "B_x": _B_in["x"],
        "B_wqkv": _B_in["wqkv"],
        "B_wo": _B_in["wo"],
    }

def reference(A_x, A_wqkv, A_wo, B_x, B_wqkv, B_wo):
    def _A_ref(x, wqkv, wo):
        B, S, D = x.shape
        H = 32; Dh = D // H; W = 256
        qkv = (lambda x, *d: x.permute(*d))((x @ wqkv).reshape(B, S, 3, H, Dh), 2, 0, 3, 1, 4)
        q, k, v = qkv[0], qkv[1], qkv[2]
        scores = torch.einsum("bhqd,bhkd->bhqk", q, k) * (Dh ** -0.5)
        idx = torch.arange(S)
        mask = (idx[:, None] - idx[None, :] >= 0) & (idx[:, None] - idx[None, :] < W)
        scores = torch.where(mask[None, None], scores, -1e9)
        p = _softmax(scores, axis=-1)
        o = torch.einsum("bhqk,bhkd->bhqd", p, v)
        return (lambda x, *d: x.permute(*d))(o, 0, 2, 1, 3).reshape(B, S, D) @ wo

    def _B_ref(x, wqkv, wo):
        B, S, D = x.shape
        H = 32
        Dh = D // H
        qkv = (lambda x, *d: x.permute(*d))((x @ wqkv).reshape(B, S, 3, H, Dh), 2, 0, 3, 1, 4)
        q, k, v = qkv[0], qkv[1], qkv[2]
        scores = torch.einsum("bhqd,bhkd->bhqk", q, k) * (Dh ** -0.5)
        p = _softmax(scores, axis=-1)
        o = torch.einsum("bhqk,bhkd->bhqd", p, v)
        return (lambda x, *d: x.permute(*d))(o, 0, 2, 1, 3).reshape(B, S, D) @ wo

    x = A_x
    x = x + _A_ref(_layernorm(x, axis=-1), A_wqkv, A_wo)
    x = x + _B_ref(_layernorm(x, axis=-1), B_wqkv, B_wo)
    x = x + _A_ref(_layernorm(x, axis=-1), A_wqkv, A_wo)
    x = x + _B_ref(_layernorm(x, axis=-1), B_wqkv, B_wo)
    return x
```

```python
import re

TRANS = ("v_exp_f32", "v_log_f32", "v_rcp_f32", "v_rsq_f32", "v_sqrt_f32", "v_sin_f32", "v_cos_f32")


def _regs(tok):
    tok = tok.strip()
    neg = tok.lstrip("-")
    if neg.startswith("abs(") or neg.startswith("|"):
        neg = neg.replace("abs(", "").replace(")", "").replace("|", "")
    tok = neg
    m = re.fullmatch(r"([vsa])(\d+)", tok)
    if m:
        return {m.group(1) + m.group(2)}
    m = re.fullmatch(r"([vsa])\[(\d+):(\d+)\]", tok)
    if m:
        return {m.group(1) + str(i) for i in range(int(m.group(2)), int(m.group(3)) + 1)}
    if tok in ("vcc", "vcc_lo", "vcc_hi"):
        return {"vcc"}
    if tok in ("exec", "exec_lo", "exec_hi"):
        return {"exec"}
    if tok == "m0":
        return {"m0"}
    return set()


class Ins:
    def __init__(self, text):
        self.text = text
        t = text.split(";")[0].strip()
        self.label = None
        self.op = None
        self.kind = None
        self.wr = set()
        self.rd = set()
        self.mf_ab = set()
        self.mf_c = set()
        self.passes = 0
        self.ws = 1
        self.store_data = set()
        self.wide_store = False
        self.lds_dma = False
        if not t:
            self.kind = "none"
            self.ws = 0
            return
        if t.endswith(":"):
            self.label = t[:-1]
            self.kind = "label"
            self.ws = 0
            return
        if t.startswith("."):
            self.kind = "none"
            self.ws = 0
            return
        parts = t.split(None, 1)
        self.op = op = parts[0]
        rest = parts[1] if len(parts) > 1 else ""
        toks = [x.strip() for x in rest.split(",")] if rest else []
        mods = ""
        if toks:
            last = toks[-1].split(None, 1)
            toks[-1] = last[0]
            mods = last[1] if len(last) > 1 else ""
        self.toks = toks
        self.mods = mods
        R = [_regs(x) for x in toks]
        if op.startswith("v_mfma"):
            self.kind = "mfma"
            self.wr = R[0]
            self.mf_ab = R[1] | R[2]
            self.mf_c = R[3]
            self.rd = self.mf_ab | self.mf_c
            self.passes = 8 if "32x32" in op else 4
        elif op.startswith("v_"):
            self.kind = "valu"
            if op.startswith("v_permlane"):
                self.wr = R[0] | R[1]
                self.rd = R[0] | R[1]
            elif op.startswith("v_cmp"):
                self.wr = R[0]
                self.rd = set().union(*R[1:])
            else:
                self.wr = set(R[0])
                self.rd = set().union(*R[1:]) if len(R) > 1 else set()
                if op.startswith("v_fmac") or op.startswith("v_dot2c") or "UNUSED_PRESERVE" in mods:
                    self.rd |= R[0]
                if "_co_" in op:
                    self.wr |= R[1]
        elif op.startswith("ds_"):
            self.kind = "ds"
            if op.startswith("ds_read") or op.startswith("ds_bpermute") or op.startswith("ds_swizzle"):
                self.wr = R[0]
                self.rd = set().union(*R[1:])
            else:
                self.rd = set().union(*R)
        elif op.startswith("buffer_") or op.startswith("global_"):
            self.kind = "vmem"
            if "load" in op and (" lds" in (" " + mods)):
                self.lds_dma = True
                self.rd = set().union(*R) | {"m0"}
            elif "load" in op:
                self.wr = R[0]
                self.rd = set().union(*R[1:])
            else:
                self.rd = set().union(*R)
                self.store_data = R[0] if op.startswith("buffer_") else R[1]
                self.wide_store = ("x3" in op or "x4" in op)
        elif op == "s_nop":
            self.kind = "nop"
            self.ws = int(toks[0], 0) + 1
        elif op.startswith("s_"):
            self.kind = "salu"
            if op.startswith("s_cmp") or op.startswith("s_cbranch") or op in (
                    "s_branch", "s_barrier", "s_waitcnt", "s_endpgm", "s_setprio", "s_sleep"):
                self.rd = set().union(*R) if R else set()
            else:
                self.wr = set(R[0]) if R else set()
                self.rd = set().union(*R[1:]) if len(R) > 1 else set()
                if "saveexec" in op:
                    self.wr |= {"exec"}
        else:
            raise ValueError("unknown instruction: " + text)


def _need(prod, cons):
    n = 0
    pw, cr, cw = prod.wr, cons.rd, cons.wr
    vw = {r for r in pw if r[0] in "va" and r != "vcc"}
    sw = {r for r in pw if r[0] == "s" or r == "vcc"}
    if prod.kind == "valu":
        isdot = prod.op.startswith("v_dot")
        if cons.kind == "mfma" and vw & cons.rd:
            n = max(n, 3 if isdot else 2)
        if prod.op in TRANS and cons.kind in ("valu", "mfma") and cons.op not in TRANS and vw & cr:
            n = max(n, 1)
        if prod.op in TRANS and cons.kind in ("vmem", "ds") and vw & cr:
            n = max(n, 1)
        if isdot and (vw & (cr | cw)):
            same = cons.op == prod.op
            if same:
                srcab = set().union(*[_regs(x) for x in cons.toks[1:3]])
                if vw & srcab:
                    n = max(n, 3)
            else:
                n = max(n, 3)
        if cons.kind == "valu":
            if cons.op.startswith("v_readfirstlane") or cons.op.startswith("v_readlane"):
                if vw & cr:
                    n = max(n, 1)
                if sw & cr:
                    n = max(n, 4)
            if cons.op.startswith("v_permlane") and vw & cr:
                n = max(n, 2)
            if ("dpp" in cons.op or "row_" in cons.mods or "quad_perm" in cons.mods) and vw & cr:
                n = max(n, 2)
            if sw & cr:
                n = max(n, 2)
            if ("sdwa" in prod.op or "op_sel" in prod.mods) and vw & (cr | cw):
                n = max(n, 1)
        if cons.kind == "vmem" and sw & cr:
            n = max(n, 5)
        if cons.kind == "salu" and sw & cr:
            n = max(n, 2)
    if prod.kind == "mfma":
        big = 12 if prod.passes == 8 else 8
        if cons.kind == "mfma":
            if pw & cons.mf_ab:
                n = max(n, big)
            if pw & cons.mf_c:
                if not (pw == cons.mf_c and prod.passes == cons.passes):
                    n = max(n, 10 if prod.passes == 8 else 6)
            elif pw & cons.wr:
                n = max(n, 10 if prod.passes == 8 else 6)
        elif cons.kind in ("valu", "ds", "vmem"):
            if pw & (cr | cw):
                n = max(n, big)
        if cons.kind == "valu" and prod.mf_c & cw:
            n = max(n, 7 if prod.passes == 8 else 3)
        if cons.kind in ("ds", "vmem") and prod.mf_c & cw:
            n = max(n, 7 if prod.passes == 8 else 3)
    if prod.kind == "salu" and "m0" in pw and cons.kind == "vmem" and cons.lds_dma:
        n = max(n, 1)
    if prod.kind == "vmem" and prod.wide_store and prod.store_data & cw:
        n = max(n, 2)
    return n


class Asm:
    def __init__(self):
        self.lines = []

    def __call__(self, text):
        for ln in text.strip("\n").split("\n"):
            self.lines.append(ln.strip())

    def label(self, name):
        self.lines.append(name + ":")

    def raw(self, text):
        self.lines.append(text)


def fix_hazards(lines, verbose=False):
    MAXD = 20
    ins = [Ins(l) for l in lines]

    def maps():
        labels = {x.label: i for i, x in enumerate(ins) if x.label}
        preds = {}
        for i, x in enumerate(ins):
            if x.op and (x.op.startswith("s_cbranch") or x.op == "s_branch"):
                tgt = x.toks[0]
                if tgt in labels:
                    preds.setdefault(labels[tgt], []).append(i)
        return preds

    def scan(i, j, dist, depth, preds, via_branch):
        worst = 0
        k = j
        while k >= 0 and dist < MAXD:
            p = ins[k]
            if p.label is not None and k in preds and depth < 4:
                for b in preds[k]:
                    worst = max(worst, scan(i, b, dist, depth + 1, preds, True))
            if p.op in ("s_branch", "s_endpgm") and not (k == j and via_branch):
                break
            if p.op:
                need = _need(p, ins[i])
                if need > dist:
                    worst = max(worst, need - dist)
                dist += p.ws
            k -= 1
        return worst

    for rounds in range(20):
        changed = False
        preds = maps()
        i = 0
        while i < len(ins):
            x = ins[i]
            if x.op and x.kind not in ("nop",):
                short = scan(i, i - 1, 0, 0, preds, False)
                if short > 0:
                    if verbose:
                        print("hazard: +%d before: %s" % (short, x.text))
                    while short > 0:
                        n = min(short, 16)
                        ins.insert(i, Ins("s_nop %d" % (n - 1)))
                        short -= n
                        i += 1
                    changed = True
                    preds = maps()
            i += 1
        if not changed:
            break
    else:
        raise RuntimeError("hazard pass did not converge")
    out = []
    for x in ins:
        if x.label or x.text.startswith("."):
            out.append(x.text)
        else:
            out.append("    " + x.text)
    return out


def kernel_desc(name, vgpr, sgpr=96):
    vg = (vgpr + 3) // 4 * 4
    return f""".p2align 6
.amdhsa_kernel {name}
  .amdhsa_next_free_vgpr {vg}
  .amdhsa_next_free_sgpr {sgpr}
  .amdhsa_accum_offset {vg}
  .amdhsa_group_segment_fixed_size 0
  .amdhsa_kernarg_size 72
  .amdhsa_user_sgpr_count 2
  .amdhsa_user_sgpr_kernarg_segment_ptr 1
  .amdhsa_system_sgpr_workgroup_id_x 1
.end_amdhsa_kernel"""
```

```python
from asmlib import Asm
from gen_qkv import WS_OT, WS_QI, WS_KV, vr, f32

ATT_VGPRS = {"A": 144, "B": 112}
ATT_LDS = {"A": 40960, "B": 163840}
NEGBIG = f32(-1e30)

VH, VM, AK1, AK2, AV, VO = 1, 2, 3, 4, 5, 6
Q1, Q2, K2, K1, VA = 8, 12, 14, 16, 20
VB = [24, 28]
E, P, O = 32, 40, 48
SB = [64, 80]
NEG, CD, CF = 96, 112, 128
TS = 2560


def gen_att(a, typ):
    name = f"att{typ}_kernel"
    L = lambda s: f"att{typ}_{s}"
    a.raw(f".globl {name}")
    a.raw(".p2align 8")
    a.raw(f".type {name},@function")
    a.label(name)
    a(f"""
s_load_dwordx2 s[8:9], s[0:1], 64
s_cmp_ge_u32 s2, 256
s_cbranch_scc1 {L('end')}
s_and_b32 s11, s2, 7
s_lshl_b32 s11, s11, 2
s_lshr_b32 s28, s2, 3
s_and_b32 s28, s28, 3
s_add_u32 s11, s11, s28
s_lshr_b32 s12, s2, 5
v_lshrrev_b32 v1, 6, v0
v_and_b32 v0, 63, v0
v_readfirstlane_b32 s13, v1
s_mul_i32 s28, s11, 163840
s_add_u32 s28, s28, {WS_KV}
""")
    if typ == "A":
        a(f"""
s_mul_i32 s29, s12, {8 * TS}
s_add_u32 s28, s28, s29
s_sub_u32 s28, s28, {8 * TS}
""")
    a(f"""
s_mov_b32 s18, {ATT_LDS[typ]}
s_mov_b32 s19, 0x20000
s_cmp_eq_u32 s13, 8
s_cbranch_scc0 {L('comp')}
s_waitcnt lgkmcnt(0)
s_add_u32 s16, s8, s28
s_addc_u32 s17, s9, 0
v_lshlrev_b32 v1, 4, v0
s_mov_b32 s30, 0
""")

    def issue_groups(n, lab, throttle):
        a(f"s_mov_b32 s31, {n}")
        a.label(L(lab))
        if throttle:
            a("s_waitcnt vmcnt(59)")
        a("s_mov_b32 m0, s30")
        a("s_sub_u32 s31, s31, 1")
        for j in range(4):
            a(f"buffer_load_dwordx4 v1, s[16:19], s30 offen offset:{1024 * j} lds")
        a("s_add_u32 s30, s30, 4096")
        a("s_cmp_lg_u32 s31, 0")
        a(f"s_cbranch_scc1 {L(lab)}")

    if typ == "A":
        issue_groups(10, "ld0", False)
        a("s_waitcnt vmcnt(0)")
        a("s_barrier")
    else:
        issue_groups(15, "ld0", False)
        a("s_waitcnt vmcnt(44)")
        a("s_barrier")
        issue_groups(15, "ld1", True)
        a("s_waitcnt vmcnt(60)")
        a("s_barrier")
        issue_groups(10, "ld2", True)
        a("s_waitcnt vmcnt(0)")
        a("s_barrier")
    a.label(L("end"))
    a("s_endpgm")

    a.label(L("comp"))
    a(f"""
s_mul_i32 s28, s11, 81920
s_mul_i32 s29, s12, {8 * 1280}
s_add_u32 s28, s28, s29
s_mul_i32 s29, s13, 1280
s_add_u32 s28, s28, s29
s_add_u32 s28, s28, {WS_QI}
s_mov_b32 s22, 1280
s_mov_b32 s23, 0x20000
s_mul_i32 s29, s11, {5 * 16384}
s_lshl_b32 s30, s12, 11
s_add_u32 s29, s29, s30
s_add_u32 s29, s29, {WS_OT}
s_sub_u32 s26, {5 * 16384}, s30
s_mov_b32 s27, 0x20000
v_lshrrev_b32 v{VH}, 5, v0
v_and_b32 v{VM}, 31, v0
v_lshlrev_b32 v{AK1}, 4, v0
v_lshlrev_b32 v{AK2}, 3, v{VM}
v_lshlrev_b32 v7, 3, v0
v_add_u32 v7, 1024, v7
s_waitcnt lgkmcnt(0)
s_add_u32 s20, s8, s28
s_addc_u32 s21, s9, 0
s_add_u32 s24, s8, s29
s_addc_u32 s25, s9, 0
buffer_load_dwordx4 {vr(Q1, 4)}, v{AK1}, s[20:23], 0 offen
buffer_load_dwordx2 {vr(Q2, 2)}, v7, s[20:23], 0 offen
v_add_u32 v{AK2}, 2304, v{AK2}
v_mul_u32_u24 v{AV}, 320, v{VH}
v_lshl_add_u32 v{AV}, v{VM}, 4, v{AV}
v_add_u32 v{AV}, 1024, v{AV}
s_lshl_b32 s28, s13, 8
v_lshlrev_b32 v{VO}, 14, v{VH}
v_lshl_add_u32 v{VO}, v{VM}, 3, v{VO}
v_add_u32 v{VO}, s28, v{VO}
s_mov_b32 s32, 0x000fffff
s_mov_b32 s33, 0x000fffff
s_mov_b32 s34, 32768
s_mov_b32 s35, 65536
s_mov_b32 s48, 0
""")
    for r in range(12):
        a(f"v_mov_b32 v{VA + r}, 0x3f803f80")
    if typ == "A":
        a(f"""
s_mul_i32 s28, s13, {TS}
v_add_u32 v{AK1}, s28, v{AK1}
v_add_u32 v{AK2}, s28, v{AK2}
v_add_u32 v{AV}, s28, v{AV}
s_add_u32 s36, s13, 1
s_cmp_eq_u32 s12, 0
s_cselect_b32 s36, s36, 99
v_lshlrev_b32 v7, 2, v{VH}
v_sub_u32 v7, v{VM}, v7
v_mov_b32 v{E}, {NEGBIG}
v_mov_b32 v{E + 1}, 0
""")
        for j in range(16):
            c = 8 * (j // 4) + j % 4
            sp = 40 + 2 * (j % 4)
            a(f"v_cmp_le_i32 s[{sp}:{sp + 1}], {c}, v7")
            if j % 4 == 3:
                for jj in range(j - 3, j + 1):
                    sq = 40 + 2 * (jj % 4)
                    a(f"v_cndmask_b32 v{CD + jj}, v{E}, v{E + 1}, s[{sq}:{sq + 1}]")
                    a(f"v_cndmask_b32 v{CF + jj}, v{E + 1}, v{E}, s[{sq}:{sq + 1}]")
        order = list(range(8, -1, -1))
    else:
        a("s_mov_b32 s36, 1")
        a("s_mov_b32 s37, 5")
        order = None
    first = 8 * TS if typ == "A" else 0
    step = -TS if typ == "A" else TS

    def readK(off):
        a(f"ds_read_b128 {vr(K1, 4)}, v{AK1} offset:{off}")
        a(f"ds_read_b64 {vr(K2, 2)}, v{AK2} offset:{off}")

    def readV(off, vb):
        a("s_mov_b64 exec, s[32:33]")
        a(f"ds_read_b128 {vr(VA, 4)}, v{AV} offset:{off}")
        a(f"ds_read_b128 {vr(vb, 4)}, v{AV} offset:{off + 640}")
        a("s_mov_b64 exec, -1")

    def max16(dst, src, init=None):
        if init is None:
            a(f"v_max3_f32 v{dst}, v{src}, v{src + 1}, v{src + 2}")
            a(f"v_max_f32 v{dst}, v{dst}, v{src + 3}")
            lo = 4
        else:
            lo = 0
        for r in range(lo, 16, 2):
            a(f"v_max3_f32 v{dst}, v{dst}, v{src + r}, v{src + r + 1}")

    c0 = vr(CD, 16) if typ == "A" else "0"
    a("s_barrier")
    readK(first)
    a("s_waitcnt vmcnt(0) lgkmcnt(0)")
    a(f"v_mfma_f32_32x32x16_bf16 {vr(SB[0], 16)}, {vr(K1, 4)}, {vr(Q1, 4)}, {c0}")
    a(f"v_mfma_f32_32x32x8_bf16 {vr(SB[0], 16)}, {vr(K2, 2)}, {vr(Q2, 2)}, {vr(SB[0], 16)}")
    max16(7, SB[0])
    a.label(L("have_m"))
    readK(first + step)
    readV(first, VB[0])
    a(f"""
v_mov_b32 v{E}, v7
v_permlane32_swap_b32 v{E}, v7
v_max_f32 v7, v7, v{E}
v_sub_f32 v7, 0, v7
""")
    for r in range(16):
        a(f"v_mov_b32 v{NEG + r}, v7")
    for r in range(16):
        a(f"v_add_f32 v{SB[0] + r}, v7, v{SB[0] + r}")
    if typ == "A":
        for r in range(16):
            a(f"v_add_f32 v{CF + r}, v7, v{CF + r}")
    for r in range(16):
        a(f"v_mov_b32 v{O + r}, 0")
    for r in range(4, 8):
        a(f"v_mov_b32 v{E + r}, 0")
    a(f"v_mov_b32 v{P + 4}, 0")
    a(f"v_mov_b32 v{P + 5}, 0")

    def tile(t, koff, voff, cblk, last=False):
        cur, nxt = SB[t % 2], SB[(t + 1) % 2]
        if not last:
            a("s_waitcnt lgkmcnt(2)")
            a(f"v_mfma_f32_32x32x16_bf16 {vr(nxt, 16)}, {vr(K1, 4)}, {vr(Q1, 4)}, {vr(cblk, 16)}")
        a(f"v_cvt_pk_bf16_f32 v{P + 6}, v{E + 4}, v{E + 5}")
        a(f"v_cvt_pk_bf16_f32 v{P + 7}, v{E + 6}, v{E + 7}")
        for r in range(4):
            a(f"v_exp_f32 v{E + r}, v{cur + r}")
        a(f"v_mfma_f32_32x32x16_bf16 {vr(O, 16)}, {vr(VB[(t + 1) % 2], 4)}, {vr(P + 4, 4)}, {vr(O, 16)}")
        a(f"v_cvt_pk_bf16_f32 v{P}, v{E}, v{E + 1}")
        a(f"v_cvt_pk_bf16_f32 v{P + 1}, v{E + 2}, v{E + 3}")
        for r in range(4):
            a(f"v_exp_f32 v{E + 4 + r}, v{cur + 4 + r}")
        if not last:
            a(f"v_mfma_f32_32x32x8_bf16 {vr(nxt, 16)}, {vr(K2, 2)}, {vr(Q2, 2)}, {vr(nxt, 16)}")
        if koff is not None:
            readK(koff)
        a(f"v_cvt_pk_bf16_f32 v{P + 2}, v{E + 4}, v{E + 5}")
        a(f"v_cvt_pk_bf16_f32 v{P + 3}, v{E + 6}, v{E + 7}")
        for r in range(4):
            a(f"v_exp_f32 v{E + r}, v{cur + 8 + r}")
        a(f"s_waitcnt lgkmcnt({2 if koff is not None else 0})")
        a(f"v_mfma_f32_32x32x16_bf16 {vr(O, 16)}, {vr(VA, 4)}, {vr(P, 4)}, {vr(O, 16)}")
        if voff is not None:
            readV(voff, VB[(t + 1) % 2])
        a(f"v_cvt_pk_bf16_f32 v{P + 4}, v{E}, v{E + 1}")
        a(f"v_cvt_pk_bf16_f32 v{P + 5}, v{E + 2}, v{E + 3}")
        for r in range(4):
            a(f"v_exp_f32 v{E + 4 + r}, v{cur + 12 + r}")

    if typ == "B":
        a("s_mov_b32 s38, 0")
        a.label(L("loop"))
        a(f"""
s_cmp_eq_u32 s38, s36
s_cbranch_scc1 {L('bar')}
s_cmp_eq_u32 s38, s37
s_cbranch_scc0 {L('nobar')}
""")
        a.label(L("bar"))
        a("s_barrier")
        a.label(L("nobar"))
        for t in range(4):
            tile(t, (t + 2) * TS, (t + 1) * TS, NEG)
        a(f"""
v_add_u32 v{AK1}, {4 * TS}, v{AK1}
v_add_u32 v{AK2}, {4 * TS}, v{AK2}
v_add_u32 v{AV}, {4 * TS}, v{AV}
s_add_u32 s38, s38, 1
s_cmp_lt_u32 s38, 16
s_cbranch_scc1 {L('loop')}
""")
        tlast = 63
    else:
        for t in range(9):
            if t < 8:
                a(f"s_cmp_lg_u32 s36, {t + 1}")
                a(f"s_cbranch_scc1 {L('nofix%d' % t)}")
                a(f"s_call_b64 s[50:51], {L('fix')}")
                a.label(L("nofix%d" % t))
            koff = (8 - (t + 2)) * TS if t + 2 <= 8 else None
            voff = (8 - (t + 1)) * TS if t + 1 <= 8 else None
            if t == 7:
                a("s_waitcnt lgkmcnt(2)")
            tile(t, koff, voff, CF if t + 1 == 8 else NEG, last=(t == 8))
        tlast = 8
    a(f"v_cvt_pk_bf16_f32 v{P + 6}, v{E + 4}, v{E + 5}")
    a(f"v_cvt_pk_bf16_f32 v{P + 7}, v{E + 6}, v{E + 7}")
    a(f"v_mfma_f32_32x32x16_bf16 {vr(O, 16)}, {vr(VB[tlast % 2], 4)}, {vr(P + 4, 4)}, {vr(O, 16)}")
    a("s_waitcnt lgkmcnt(0)")
    a(f"""
v_mov_b32 v{E}, v{O + 8}
v_mov_b32 v{E + 1}, v{O + 8}
v_permlane32_swap_b32 v{E}, v{E + 1}
v_mul_f32 v{E + 2}, 0, v{E + 1}
""")
    for r in range(12):
        a(f"v_fmac_f32 v{E + 2}, 0, v{O + r}")
    a(f"""
v_rcp_f32 v{E + 1}, v{E + 1}
v_cmp_u_f32 vcc, v{E + 2}, v{E + 2}
s_cmp_eq_u32 s48, 0
s_cselect_b64 s[40:41], vcc, 0
s_cmp_lg_u64 s[40:41], 0
s_cbranch_scc1 {L('slow')}
""")
    for r in range(12):
        a(f"v_mul_f32 v{O + r}, v{E + 1}, v{O + r}")
    for r in range(6):
        a(f"v_cvt_pk_bf16_f32 v{P + r}, v{O + 2 * r}, v{O + 2 * r + 1}")
    a(f"""
buffer_store_dwordx2 {vr(P, 2)}, v{VO}, s[24:27], 0 offen
buffer_store_dwordx2 {vr(P + 2, 2)}, v{VO}, s[24:27], s34 offen
s_mov_b32 exec_hi, 0
buffer_store_dwordx2 {vr(P + 4, 2)}, v{VO}, s[24:27], s35 offen
s_endpgm
""")

    a.label(L("slow"))
    a("s_mov_b32 s48, 1")
    a(f"v_mov_b32 v7, {NEGBIG}")

    def slow_tile(off, c):
        readK(off)
        a("s_waitcnt lgkmcnt(0)")
        a(f"v_mfma_f32_32x32x16_bf16 {vr(SB[0], 16)}, {vr(K1, 4)}, {vr(Q1, 4)}, {c}")
        a(f"v_mfma_f32_32x32x8_bf16 {vr(SB[0], 16)}, {vr(K2, 2)}, {vr(Q2, 2)}, {vr(SB[0], 16)}")
        max16(7, SB[0], init=True)

    if typ == "B":
        a(f"""
s_mov_b32 s36, 99
s_mov_b32 s37, 99
s_mov_b32 s38, 0
v_subrev_u32 v{AV}, {64 * TS}, v{AV}
""")
        a.label(L("slow_loop"))
        a(f"v_subrev_u32 v{AK1}, {TS}, v{AK1}")
        a(f"v_subrev_u32 v{AK2}, {TS}, v{AK2}")
        slow_tile(0, "0")
        a(f"""
s_add_u32 s38, s38, 1
s_cmp_lt_u32 s38, 64
s_cbranch_scc1 {L('slow_loop')}
s_branch {L('have_m')}
""")
    else:
        for r in range(16):
            a(f"v_sub_f32 v{CF + r}, {NEGBIG}, v{CD + r}")
        for p in range(8, 0, -1):
            a(f"s_cmp_ge_u32 {p}, s36")
            a(f"s_cbranch_scc1 {L('sskip%d' % p)}")
            slow_tile((8 - p) * TS, vr(CF, 16) if p == 8 else "0")
            a.label(L("sskip%d" % p))
        slow_tile(8 * TS, vr(CD, 16))
        a(f"s_branch {L('have_m')}")
        a.label(L("fix"))
        a("s_nop 7")
        for r in range(16):
            a(f"v_mov_b32 v{NEG + r}, {NEGBIG}")
        for r in range(16):
            a(f"v_mov_b32 v{CF + r}, {NEGBIG}")
        a("s_nop 1")
        a("s_setpc_b64 s[50:51]")
```

```python
from asmlib import Asm
from gen_qkv import WS_X, WS_OT, vr

OP_VGPRS = 104
OP_LDS = 158208
SLOT = 36864


def gen_op_stub(a, layer):
    name = f"op{layer}_kernel"
    a.raw(f".globl {name}")
    a.raw(".p2align 8")
    a.raw(f".type {name},@function")
    a.label(name)
    a(f"s_load_dwordx2 s[4:5], s[0:1], {0 if layer == 0 else 64}")
    a(f"s_load_dwordx2 s[6:7], s[0:1], {16 if layer % 2 == 0 else 40}")
    a("s_load_dwordx2 s[8:9], s[0:1], 64")
    a(f"s_load_dwordx2 s[44:45], s[0:1], {48 if layer == 3 else 64}")
    a(f"s_mov_b32 s10, {0 if layer == 0 else WS_X[layer]}")
    a(f"s_mov_b32 s46, {0 if layer == 3 else WS_X[layer + 1]}")
    a("s_branch op_body")


def gen_op_body(a):
    a.raw(".p2align 8")
    a.label("op_body")
    a(f"""
s_cmp_ge_u32 s2, 256
s_cbranch_scc1 op_end
s_and_b32 s11, s2, 7
s_lshl_b32 s11, s11, 2
s_lshr_b32 s28, s2, 3
s_and_b32 s28, s28, 3
s_add_u32 s11, s11, s28
s_lshr_b32 s12, s2, 5
v_lshrrev_b32 v1, 6, v0
v_and_b32 v0, 63, v0
v_readfirstlane_b32 s13, v1
s_lshl_b32 s28, s11, 9
s_sub_u32 s18, 2621440, s28
s_add_u32 s28, s28, {WS_OT}
s_mov_b32 s19, 0x20000
s_mul_i32 s29, s12, 160
s_sub_u32 s22, 819200, s29
s_mov_b32 s23, 0x20000
s_mul_i32 s30, s11, 81920
s_add_u32 s30, s30, s29
s_add_u32 s10, s10, s30
s_add_u32 s46, s46, s30
s_waitcnt lgkmcnt(0)
s_add_u32 s16, s8, s28
s_addc_u32 s17, s9, 0
s_add_u32 s20, s6, s29
s_addc_u32 s21, s7, 0
s_cmp_ge_u32 s13, 4
s_cbranch_scc0 op_cons
""")
    a("""
s_sub_u32 s13, s13, 4
v_lshrrev_b32 v1, 5, v0
v_lshrrev_b32 v2, 3, v0
v_xor_b32 v2, v2, v1
v_and_b32 v2, 3, v2
v_and_b32 v3, 7, v0
v_lshlrev_b32 v1, 14, v1
v_lshl_add_u32 v1, v2, 7, v1
v_lshl_add_u32 v1, v3, 4, v1
s_lshl_b32 s28, s13, 17
v_add_u32 v1, s28, v1
s_mul_i32 s28, s13, 40960
""")
    for j in range(5):
        a(f"""
v_add_u32 v2, {64 * j}, v0
v_mul_u32_u24 v3, 6554, v2
v_lshrrev_b32 v3, 16, v3
v_mul_u32_u24 v4, 10, v3
v_sub_u32 v2, v2, v4
v_mul_u32_u24 v3, 1280, v3
v_lshl_add_u32 v3, v2, 4, v3
v_add_u32 v{8 + j}, s28, v3
""")
    a("""
s_lshl_b32 s30, s13, 12
s_mul_i32 s31, s13, 5120
s_add_u32 s31, s31, 16384
s_mov_b32 s32, 0
s_mov_b32 s33, 0
s_mov_b32 s36, 0
""")
    a.label("op_ld_loop")
    a(f"""
s_cmp_lt_u32 s36, 4
s_cbranch_scc1 op_ld_issue
s_sub_u32 s30, s30, {4 * SLOT}
s_sub_u32 s31, s31, {4 * SLOT}
s_waitcnt vmcnt(27)
s_barrier
s_waitcnt vmcnt(18)
s_barrier
""")
    a.label("op_ld_issue")
    for j in range(5):
        if j < 4:
            a(f"s_add_u32 m0, s30, {j * 1024}")
            a(f"s_add_u32 s34, s32, {j * 32768}")
            a("buffer_load_dwordx4 v1, s[16:19], s34 offen lds")
        a(f"s_add_u32 m0, s31, {j * 1024}")
        a("s_nop 0")
        a(f"buffer_load_dwordx4 v{8 + j}, s[20:23], s33 offen lds")
    a(f"""
s_add_u32 s30, s30, {SLOT}
s_add_u32 s31, s31, {SLOT}
s_add_u32 s32, s32, {32 * 16384}
s_add_u32 s33, s33, {128 * 1280}
s_add_u32 s36, s36, 1
s_cmp_lt_u32 s36, 5
s_cbranch_scc1 op_ld_loop
s_waitcnt vmcnt(18)
s_barrier
s_waitcnt vmcnt(9)
s_barrier
s_waitcnt vmcnt(0)
s_barrier
""")
    a.label("op_end")
    a("s_endpgm")

    AO, AW = 2, 3
    VX = 4
    XR = 8
    ACC = 20
    F = [40, 64]
    a.label("op_cons")
    a("""
s_add_u32 s24, s4, s10
s_addc_u32 s25, s5, 0
s_mov_b32 s26, 80800
s_mov_b32 s27, 0x20000
s_add_u32 s40, s44, s46
s_addc_u32 s41, s45, 0
s_mov_b32 s42, 80800
s_mov_b32 s43, 0x20000
s_mul_i32 s28, s13, 20480
""")
    for j in range(3):
        a(f"""
v_add_u32 v88, {64 * j}, v0
v_mul_u32_u24 v89, 6554, v88
v_lshrrev_b32 v89, 16, v89
v_mul_u32_u24 v90, 10, v89
v_sub_u32 v88, v88, v90
v_mul_u32_u24 v89, 1280, v89
v_lshl_add_u32 v89, v88, 4, v89
v_add_u32 v{VX + j}, s28, v89
""")
    a(f"""
v_and_b32 v88, 32, v0
v_lshlrev_b32 v88, 20, v88
v_add_u32 v{VX + 2}, v88, v{VX + 2}
""")
    for j in range(3):
        a(f"buffer_load_dwordx4 {vr(XR + 4 * j, 4)}, v{VX + j}, s[24:27], 0 offen")
    a(f"""
v_lshrrev_b32 v88, 4, v0
v_and_b32 v89, 1, v88
v_xor_b32 v89, s13, v89
v_lshlrev_b32 v{AO}, 9, v88
v_lshl_add_u32 v{AO}, v89, 7, v{AO}
v_and_b32 v89, 15, v0
v_lshl_add_u32 v{AO}, v89, 3, v{AO}
v_lshrrev_b32 v90, 2, v0
v_mul_u32_u24 v90, 160, v90
v_and_b32 v91, 3, v0
v_lshl_add_u32 v90, v91, 3, v90
v_add_u32 v{AW}, 16384, v90
s_mul_i32 s28, s13, 2560
s_add_u32 s28, s28, {4 * SLOT}
v_mul_u32_u24 v92, 160, v89
v_lshl_add_u32 v92, v88, 3, v92
v_add_u32 v92, s28, v92
v_lshl_add_u32 v93, v0, 4, s28
s_mov_b32 s37, 0
""")
    for r in range(20):
        a(f"v_mov_b32 v{ACC + r}, 0")

    def reads(Fb, ks):
        a(f"ds_read_b64 {vr(Fb, 2)}, v{AO} offset:{ks * 4096}")
        a(f"ds_read_b64 {vr(Fb + 2, 2)}, v{AO} offset:{ks * 4096 + 2048}")
        for t in range(5):
            for rho in range(2):
                a(f"ds_read_b64_tr_b16 {vr(Fb + 4 + 4 * t + 2 * rho, 2)}, v{AW} offset:{ks * 5120 + rho * 2560 + t * 32}")

    def compute(Fb):
        for t in range(5):
            acc = vr(ACC + 4 * t, 4)
            a(f"v_mfma_f32_16x16x32_bf16 {acc}, {vr(Fb + 4 + 4 * t, 4)}, {vr(Fb, 4)}, {acc}")

    a("s_barrier")
    reads(F[0], 0)
    a.label("op_loop")
    for ks in range(3):
        a("s_waitcnt lgkmcnt(0)")
        reads(F[(ks + 1) % 2], ks + 1)
        compute(F[ks % 2])
    a(f"""
s_add_u32 s37, s37, 1
s_mov_b32 s39, {SLOT}
s_cmp_eq_u32 s37, 4
s_cmov_b32 s39, {(-3 * SLOT) & 0xffffffff}
s_cmp_eq_u32 s37, 5
s_waitcnt lgkmcnt(0)
s_cbranch_scc1 op_last
s_barrier
v_add_u32 v{AO}, s39, v{AO}
v_add_u32 v{AW}, s39, v{AW}
""")
    reads(F[0], 0)
    compute(F[1])
    a("s_branch op_loop")
    a.label("op_last")
    compute(F[1])
    for t in range(5):
        a(f"v_cvt_pk_bf16_f32 v{40 + 2 * t}, v{ACC + 4 * t}, v{ACC + 4 * t + 1}")
        a(f"v_cvt_pk_bf16_f32 v{41 + 2 * t}, v{ACC + 4 * t + 2}, v{ACC + 4 * t + 3}")
        a(f"ds_write_b64 v92, {vr(40 + 2 * t, 2)} offset:{32 * t}")
    a("s_waitcnt lgkmcnt(0)")
    for j in range(3):
        a(f"ds_read_b128 {vr(64 + 4 * j, 4)}, v93 offset:{1024 * j}")
    a("s_waitcnt vmcnt(0)")
    for j in range(3):
        a(f"s_waitcnt lgkmcnt({2 - j})")
        for r in range(4):
            o, x = 64 + 4 * j + r, XR + 4 * j + r
            a(f"""
v_lshlrev_b32 v88, 16, v{o}
v_lshlrev_b32 v89, 16, v{x}
v_and_b32 v90, 0xffff0000, v{o}
v_and_b32 v91, 0xffff0000, v{x}
v_add_f32 v88, v88, v89
v_add_f32 v90, v90, v91
v_cvt_pk_bf16_f32 v{76 + 4 * j + r}, v88, v90
""")
        a(f"buffer_store_dwordx4 {vr(76 + 4 * j, 4)}, v{VX + j}, s[40:43], 0 offen")
    a("s_endpgm")
```

```python
import struct
from asmlib import Asm

WS_X = [None, 0x0, 0x280000, 0x500000]
WS_OT = 0x780000
WS_QI = 0xA00000
WS_KV = 0xC80000
QI_BYTES = 32 * 81920
KV_BYTES = 32 * 163840
QSCALE = (20 ** -0.5) * 1.4426950408889634


def f32(x):
    return "0x%08x" % struct.unpack("<I", struct.pack("<f", x))[0]


def vr(base, n):
    return f"v[{base}:{base + n - 1}]"


QKV_VGPRS = 192


def gen_qkv_stub(a, layer):
    name = f"qkv{layer}_kernel"
    a.raw(f".globl {name}")
    a.raw(".p2align 8")
    a.raw(f".type {name},@function")
    a.label(name)
    a(f"s_load_dwordx2 s[4:5], s[0:1], {0 if layer == 0 else 64}")
    a(f"s_load_dwordx2 s[6:7], s[0:1], {8 if layer % 2 == 0 else 32}")
    a("s_load_dwordx2 s[8:9], s[0:1], 64")
    a(f"s_mov_b32 s10, {0 if layer == 0 else WS_X[layer]}")
    a("s_branch qkv_body")


def gen_qkv_body(a):
    a.raw(".p2align 8")
    a.label("qkv_body")
    a("""
s_cmp_ge_u32 s2, 256
s_cbranch_scc1 qkv_end
s_and_b32 s28, s2, 7
s_lshr_b32 s29, s2, 3
s_lshr_b32 s11, s28, 1
s_lshl_b32 s11, s11, 2
s_and_b32 s30, s29, 3
s_add_u32 s11, s11, s30
s_and_b32 s12, s28, 1
s_lshl_b32 s12, s12, 3
s_lshr_b32 s30, s29, 2
s_add_u32 s12, s12, s30
s_cmp_ge_u32 s12, 15
s_cbranch_scc1 qkv_end
v_lshrrev_b32 v1, 6, v0
v_and_b32 v0, 63, v0
v_readfirstlane_b32 s13, v1
s_mul_i32 s28, s11, 163840
s_add_u32 s28, s28, s10
s_lshl_b32 s29, s12, 8
s_mov_b32 s18, 163840
s_mov_b32 s19, 0x20000
s_sub_u32 s22, 2457600, s29
s_mov_b32 s23, 0x20000
s_waitcnt lgkmcnt(0)
s_add_u32 s16, s4, s28
s_addc_u32 s17, s5, 0
s_add_u32 s20, s6, s29
s_addc_u32 s21, s7, 0
s_cmp_ge_u32 s13, 4
s_cbranch_scc0 qkv_cons
""")
    a("""
s_sub_u32 s13, s13, 4
v_lshrrev_b32 v1, 3, v0
s_lshl_b32 s28, s13, 3
v_add_u32 v1, s28, v1
v_lshrrev_b32 v2, 1, v1
v_xor_b32 v2, v2, v0
v_and_b32 v2, 7, v2
v_mul_u32_u24 v1, 1280, v1
v_lshl_add_u32 v1, v2, 4, v1
v_lshrrev_b32 v3, 4, v0
v_lshrrev_b32 v4, 2, v0
v_xor_b32 v4, v4, v3
v_and_b32 v4, 3, v4
v_and_b32 v5, 3, v0
s_lshl_b32 s28, s13, 2
v_add_u32 v3, s28, v3
v_mul_u32_u24 v2, 3840, v3
v_lshl_add_u32 v2, v4, 6, v2
v_lshl_add_u32 v2, v5, 4, v2
s_lshl_b32 s30, s13, 10
s_mov_b32 s31, 0
s_mov_b32 s32, 0
s_mov_b32 s33, 0
""")
    a.label("qkv_ld_loop")
    a("""
s_cmp_lt_u32 s33, 5
s_cbranch_scc1 qkv_ld_issue
s_cmp_eq_u32 s33, 5
s_cbranch_scc0 qkv_ld_b
s_sub_u32 s30, s30, 163840
s_waitcnt vmcnt(32)
s_barrier
""")
    a.label("qkv_ld_b")
    a("""
s_waitcnt vmcnt(24)
s_barrier
""")
    a.label("qkv_ld_issue")
    for j in range(4):
        a(f"s_add_u32 m0, s30, {j * 4096}")
        a(f"s_add_u32 s34, s31, {j * 40960}")
        a("buffer_load_dwordx4 v1, s[16:19], s34 offen lds")
        a(f"s_add_u32 m0, s30, {16384 + j * 4096}")
        a(f"s_add_u32 s35, s32, {j * 16 * 3840}")
        a("buffer_load_dwordx4 v2, s[20:23], s35 offen lds")
    a(f"""
s_add_u32 s30, s30, 32768
s_add_u32 s31, s31, 128
s_add_u32 s32, s32, {64 * 3840}
s_add_u32 s33, s33, 1
s_cmp_lt_u32 s33, 10
s_cbranch_scc1 qkv_ld_loop
s_waitcnt vmcnt(24)
s_barrier
s_waitcnt vmcnt(16)
s_barrier
s_waitcnt vmcnt(8)
s_barrier
s_waitcnt vmcnt(0)
s_barrier
""")
    a.label("qkv_end")
    a("s_endpgm")

    ACC = 64
    F = [128, 144]
    AA = 8
    AB = 16
    ST = 18
    EO = 24
    VH, VM = 2, 3
    a.label("qkv_cons")
    a(f"""
s_lshr_b32 s14, s13, 1
s_and_b32 s15, s13, 1
v_lshrrev_b32 v{VH}, 5, v0
v_and_b32 v{VM}, 31, v0
v_lshrrev_b32 v4, 1, v{VM}
v_xor_b32 v4, v4, v{VH}
v_and_b32 v4, 7, v4
v_lshlrev_b32 v4, 4, v4
v_lshl_add_u32 v4, v{VM}, 7, v4
s_lshl_b32 s28, s14, 13
s_lshl_b32 s29, s15, 12
s_add_u32 s30, s28, s29
s_xor_b32 s31, s30, 4096
v_add_u32 v{AA}, s30, v4
v_add_u32 v{AA + 4}, s31, v4
""")
    for i in range(2):
        for ks in range(1, 4):
            a(f"v_xor_b32 v{AA + 4 * i + ks}, {ks << 5}, v{AA + 4 * i}")
    a(f"""
v_lshrrev_b32 v4, 2, v0
v_and_b32 v4, 3, v4
v_lshl_add_u32 v5, v{VH}, 3, v4
v_lshlrev_b32 v5, 8, v5
v_and_b32 v6, 16, v0
v_lshl_add_u32 v5, v6, 1, v5
v_and_b32 v6, 3, v0
v_lshl_add_u32 v5, v6, 3, v5
s_lshl_b32 s28, s15, 1
s_add_u32 s28, s28, s14
v_xor_b32 v4, s28, v4
v_lshl_add_u32 v5, v4, 6, v5
v_add_u32 v{AB}, 16384, v5
v_xor_b32 v{AB + 1}, 64, v{AB}
s_mov_b32 s36, 0x3f803f80
""")
    for r in range(6):
        a(f"v_mov_b32 v{ST + r}, 0")
    for r in range(64):
        a(f"v_mov_b32 v{ACC + r}, 0")
    a("""
s_lshl_b32 s40, s11, 2
s_lshl_b32 s28, s14, 1
s_add_u32 s40, s40, s28
s_add_u32 s40, s40, s15
s_xor_b32 s41, s40, 1
s_mov_b32 s27, 0x20000
s_mov_b32 s37, 0
s_mov_b32 s38, 1.0
s_cmp_ge_u32 s12, 10
s_cbranch_scc1 qkv_v_setup
""")
    a(f"""
s_mov_b32 s42, 81920
s_mov_b32 s43, 1280
s_mov_b32 s44, 1024
s_mov_b32 s28, {WS_QI}
s_mov_b32 s26, {QI_BYTES}
s_mov_b32 s38, {f32(QSCALE)}
s_cmp_ge_u32 s12, 5
s_cmov_b32 s42, 163840
s_cmov_b32 s43, 2560
s_cmov_b32 s44, 2304
s_cmov_b32 s28, {WS_KV}
s_cmov_b32 s26, {KV_BYTES}
s_cmov_b32 s38, 1.0
s_cselect_b32 s29, 5, 0
s_add_u32 s24, s8, s28
s_addc_u32 s25, s9, 0
s_sub_u32 s29, s12, s29
s_mul_i32 s40, s40, s43
s_mul_i32 s41, s41, s43
s_lshl_b32 s29, s29, 5
s_lshl_b32 s28, s15, 4
s_add_u32 s29, s29, s28
v_lshlrev_b32 v6, 4, v{VM}
v_lshlrev_b32 v7, 3, v{VM}
v_add_u32 v7, s44, v7
""")
    for j in range(2):
        a(f"s_xor_b32 s28, s14, {j}")
        a("s_lshl_b32 s28, s28, 3")
        a("s_add_u32 s28, s28, s29")
        for g in range(4):
            e = EO + 4 * j + g
            a(f"""
s_add_u32 s30, s28, {2 * g}
v_add_u32 v4, s30, v{VH}
v_mul_u32_u24 v5, 205, v4
v_lshrrev_b32 v5, 10, v5
v_mul_u32_u24 v32, 5, v5
v_sub_u32 v4, v4, v32
v_lshrrev_b32 v32, 1, v4
v_lshl_add_u32 v32, v32, 9, v6
v_and_b32 v33, 1, v4
v_lshl_add_u32 v32, v33, 3, v32
v_cmp_eq_u32 s[46:47], 4, v4
v_cndmask_b32 v32, v32, v7, s[46:47]
v_mul_lo_u32 v5, v5, s42
v_add_u32 v{e}, v5, v32
""")
    gen_mainloop(a, "qk", ACC, F, AA, AB, ST)
    gen_stats(a, ST, VH, VM)
    CS = 128
    a(f"""
s_lshl_b32 s28, s14, 8
s_lshl_b32 s29, s15, 7
s_add_u32 s28, s28, s29
v_lshl_add_u32 v4, v{VM}, 2, s28
v_xor_b32 v5, 128, v4
ds_read_b32 v8, v4
ds_read_b32 v9, v4 offset:512
ds_read_b32 v10, v5
ds_read_b32 v11, v5 offset:512
s_lshl_b32 s28, s15, 8
s_lshl_b32 s29, s14, 7
s_add_u32 s28, s28, s29
v_lshl_add_u32 v4, v{VH}, 4, s28
v_xor_b32 v5, 128, v4
""")
    for j in range(2):
        for g in range(4):
            a(f"ds_read_b128 {vr(CS + 16 * j + 4 * g, 4)}, v{4 + j} offset:{1024 + 32 * g}")
    a("s_waitcnt lgkmcnt(0)")
    T = 160
    n = 0
    for i in range(2):
        for j in range(2):
            for g in range(4):
                t = T + 8 * (n % 4)
                n += 1
                for r in range(4):
                    a(f"v_mul_f32 v{t + r}, v{9 + 2 * i}, v{CS + 16 * j + 4 * g + r}")
                for r in range(4):
                    a(f"v_fmac_f32 v{t + r}, v{8 + 2 * i}, v{ACC + (2 * i + j) * 16 + 4 * g + r}")
                a(f"v_cvt_pk_bf16_f32 v{t + 4}, v{t}, v{t + 1}")
                a(f"v_cvt_pk_bf16_f32 v{t + 5}, v{t + 2}, v{t + 3}")
                a(f"buffer_store_dwordx2 {vr(t + 4, 2)}, v{EO + 4 * j + g}, s[24:27], s{40 + i} offen")
    a("s_endpgm")

    a.label("qkv_v_setup")
    a(f"""
s_add_u32 s24, s8, {WS_KV}
s_addc_u32 s25, s9, 0
s_mov_b32 s26, {KV_BYTES}
s_mul_i32 s40, s40, 2560
s_mul_i32 s41, s41, 2560
s_sub_u32 s29, s12, 10
s_lshl_b32 s29, s29, 7
s_lshl_b32 s28, s15, 6
s_add_u32 s29, s29, s28
s_mov_b32 s42, 163840
v_mul_u32_u24 v6, 320, v{VH}
v_add_u32 v6, 1024, v6
""")
    for j in range(2):
        a(f"""
s_xor_b32 s28, s14, {j}
s_lshl_b32 s28, s28, 5
s_add_u32 s28, s28, s29
v_add_u32 v4, s28, v{VM}
v_mul_u32_u24 v5, 3277, v4
v_lshrrev_b32 v5, 16, v5
v_mul_u32_u24 v32, 20, v5
v_sub_u32 v4, v4, v32
v_lshl_add_u32 v4, v4, 4, v6
v_mul_lo_u32 v5, v5, s42
v_add_u32 v{EO + j}, v5, v4
""")
    gen_mainloop(a, "v", ACC, F, AA, AB, ST)
    gen_stats(a, ST, VH, VM)
    AV, BV = 128, 160
    a(f"""
s_lshl_b32 s28, s15, 8
s_lshl_b32 s29, s14, 7
s_add_u32 s28, s28, s29
v_lshl_add_u32 v4, v{VM}, 2, s28
v_xor_b32 v5, 128, v4
ds_read_b32 v8, v4 offset:1024
ds_read_b32 v9, v5 offset:1024
s_lshl_b32 s28, s14, 8
s_lshl_b32 s29, s15, 7
s_add_u32 s28, s28, s29
v_lshl_add_u32 v4, v{VH}, 4, s28
v_xor_b32 v5, 128, v4
""")
    for i in range(2):
        for g in range(4):
            a(f"ds_read_b128 {vr(AV + 16 * i + 4 * g, 4)}, v{4 + i} offset:{32 * g}")
            a(f"ds_read_b128 {vr(BV + 16 * i + 4 * g, 4)}, v{4 + i} offset:{512 + 32 * g}")
    a("s_waitcnt lgkmcnt(0)")
    n = 0
    for i in range(2):
        for j in range(2):
            for gp in range(2):
                t = 32 + 12 * (n % 2)
                n += 1
                for r in range(8):
                    a(f"v_mul_f32 v{t + r}, v{8 + j}, v{BV + 16 * i + 8 * gp + r}")
                for r in range(8):
                    a(f"v_fmac_f32 v{t + r}, v{AV + 16 * i + 8 * gp + r}, v{ACC + (2 * i + j) * 16 + 8 * gp + r}")
                for r in range(4):
                    a(f"v_cvt_pk_bf16_f32 v{t + 8 + r}, v{t + 2 * r}, v{t + 2 * r + 1}")
                a(f"buffer_store_dwordx4 {vr(t + 8, 4)}, v{EO + j}, s[24:27], s{40 + i} offen offset:{640 * gp}")
    a("s_endpgm")


def gen_reads(a, Fb, ks, AA, AB):
    a(f"ds_read_b128 {vr(Fb, 4)}, v{AA + ks}")
    a(f"ds_read_b64_tr_b16 {vr(Fb + 8, 2)}, v{AB} offset:{ks * 4096}")
    a(f"ds_read_b64_tr_b16 {vr(Fb + 10, 2)}, v{AB} offset:{ks * 4096 + 1024}")
    a(f"ds_read_b64_tr_b16 {vr(Fb + 12, 2)}, v{AB + 1} offset:{ks * 4096}")
    a(f"ds_read_b64_tr_b16 {vr(Fb + 14, 2)}, v{AB + 1} offset:{ks * 4096 + 1024}")
    a(f"ds_read_b128 {vr(Fb + 4, 4)}, v{AA + 4 + ks}")


def gen_compute(a, typ, Fb, ACC, ST):
    dots = []
    for r in range(4):
        dots.append(f"v_dot2_f32_bf16 v{ST + r % 2}, v{Fb + r}, s36, v{ST + r % 2}")
        dots.append(f"v_dot2_f32_bf16 v{ST + 2 + r % 2}, v{Fb + r}, v{Fb + r}, v{ST + 2 + r % 2}")
        dots.append(f"v_dot2_f32_bf16 v{ST + 4 + r % 2}, v{Fb + 8 + r}, s36, v{ST + 4 + r % 2}")
    n = 0
    for i in range(2):
        for j in range(2):
            acc = vr(ACC + (2 * i + j) * 16, 16)
            xa, wb = vr(Fb + 4 * i, 4), vr(Fb + 8 + 4 * j, 4)
            if typ == "qk":
                a(f"v_mfma_f32_32x32x16_bf16 {acc}, {wb}, {xa}, {acc}")
            else:
                a(f"v_mfma_f32_32x32x16_bf16 {acc}, {xa}, {wb}, {acc}")
            for d in dots[3 * n:3 * n + 3]:
                a(d)
            n += 1


def gen_mainloop(a, typ, ACC, F, AA, AB, ST):
    a("s_barrier")
    gen_reads(a, F[0], 0, AA, AB)
    a.label(f"qkv_loop_{typ}")
    for ks in range(3):
        gen_reads(a, F[(ks + 1) % 2], ks + 1, AA, AB)
        a("s_waitcnt lgkmcnt(6)")
        gen_compute(a, typ, F[ks % 2], ACC, ST)
    a(f"""
s_add_u32 s37, s37, 1
s_mov_b32 s39, 32768
s_cmp_eq_u32 s37, 5
s_cmov_b32 s39, {(-131072) & 0xffffffff}
s_cmp_eq_u32 s37, 10
s_waitcnt lgkmcnt(0)
s_cbranch_scc1 qkv_last_{typ}
s_barrier
""")
    for r in range(10):
        a(f"v_add_u32 v{AA + r}, s39, v{AA + r}")
    gen_reads(a, F[0], 0, AA, AB)
    gen_compute(a, typ, F[1], ACC, ST)
    a(f"s_branch qkv_loop_{typ}")
    a.label(f"qkv_last_{typ}")
    gen_compute(a, typ, F[1], ACC, ST)


def gen_stats(a, ST, VH, VM):
    a(f"""
v_add_f32 v4, v{ST}, v{ST + 1}
v_add_f32 v5, v{ST + 2}, v{ST + 3}
v_add_f32 v6, v{ST + 4}, v{ST + 5}
v_mov_b32 v7, v4
v_mov_b32 v8, v5
v_mov_b32 v9, v6
v_permlane32_swap_b32 v7, v4
v_permlane32_swap_b32 v8, v5
v_permlane32_swap_b32 v9, v6
v_add_f32 v4, v4, v7
v_add_f32 v5, v5, v8
v_add_f32 v6, v6, v9
v_mul_f32 v4, {f32(1.0 / 640)}, v4
v_mul_f32 v5, {f32(1.0 / 640)}, v5
v_fma_f32 v5, -v4, v4, v5
v_max_f32 v5, 0, v5
v_cvt_pk_bf16_f32 v7, v4, v5
v_and_b32 v5, 0xffff0000, v7
v_lshlrev_b32 v4, 16, v7
v_add_f32 v5, {f32(1e-5)}, v5
v_cvt_pk_bf16_f32 v5, v5, v5
v_and_b32 v5, 0xffff0000, v5
v_sqrt_f32 v5, v5
v_cvt_pk_bf16_f32 v5, v5, v5
v_and_b32 v5, 0xffff0000, v5
v_rcp_f32 v5, v5
v_mul_f32 v5, s38, v5
v_mul_f32 v4, -v4, v5
s_lshl_b32 s28, s14, 8
s_lshl_b32 s29, s15, 7
s_add_u32 s28, s28, s29
v_lshl_add_u32 v7, v{VM}, 2, s28
ds_write_b32 v7, v5
ds_write_b32 v7, v4 offset:512
s_lshl_b32 s28, s15, 8
s_lshl_b32 s29, s14, 7
s_add_u32 s28, s28, s29
v_lshl_add_u32 v7, v{VM}, 2, s28
ds_write_b32 v7, v6 offset:1024
s_waitcnt lgkmcnt(0)
s_barrier
""")
```

```python
import sys
from asmlib import Asm, fix_hazards, kernel_desc
from gen_qkv import *
from gen_op import *
from gen_att import *

HDR = open("interleave_layers__sliding_block__mha_block__prompt.s.ref").read().split("; Override launch")[0]

def build(verbose=False):
    launches = []
    for l in range(4):
        launches.append(f"; @launch kernel=qkv{l}_kernel grid=(256,1,1) block=(512,1,1) lds=163840")
        t = "A" if l % 2 == 0 else "B"
        launches.append(f"; @launch kernel=att{t}_kernel grid=(256,1,1) block=(576,1,1) lds={ATT_LDS[t]}")
        launches.append(f"; @launch kernel=op{l}_kernel grid=(256,1,1) block=(512,1,1) lds={OP_LDS}")
    a = Asm()
    for l in range(4):
        gen_qkv_stub(a, l)
    gen_qkv_body(a)
    gen_att(a, "A")
    gen_att(a, "B")
    for l in range(4):
        gen_op_stub(a, l)
    gen_op_body(a)
    body = fix_hazards(a.lines, verbose)
    out = [HDR.rstrip("\n")] + launches
    out.append('.amdgcn_target "amdgcn-amd-amdhsa--gfx950"')
    out.append(".text")
    out += body
    out.append('.section .rodata,"a"')
    for l in range(4):
        out.append(kernel_desc(f"qkv{l}_kernel", QKV_VGPRS))
        out.append(kernel_desc(f"op{l}_kernel", OP_VGPRS))
    out.append(kernel_desc("attA_kernel", ATT_VGPRS["A"]))
    out.append(kernel_desc("attB_kernel", ATT_VGPRS["B"]))
    return "\n".join(out) + "\n"

if __name__ == "__main__":
    dst = sys.argv[1] if len(sys.argv) > 1 else "interleave_layers__sliding_block__mha_block__prompt.s"
    open(dst, "w").write(build(verbose="-v" in sys.argv))
```

```python
import re

TRANS = ("v_exp_f32", "v_log_f32", "v_rcp_f32", "v_rsq_f32", "v_sqrt_f32", "v_sin_f32", "v_cos_f32")


def _regs(tok):
    tok = tok.strip()
    neg = tok.lstrip("-")
    if neg.startswith("abs(") or neg.startswith("|"):
        neg = neg.replace("abs(", "").replace(")", "").replace("|", "")
    tok = neg
    m = re.fullmatch(r"([vsa])(\d+)", tok)
    if m:
        return {m.group(1) + m.group(2)}
    m = re.fullmatch(r"([vsa])\[(\d+):(\d+)\]", tok)
    if m:
        return {m.group(1) + str(i) for i in range(int(m.group(2)), int(m.group(3)) + 1)}
    if tok in ("vcc", "vcc_lo", "vcc_hi"):
        return {"vcc"}
    if tok in ("exec", "exec_lo", "exec_hi"):
        return {"exec"}
    if tok == "m0":
        return {"m0"}
    return set()


class Ins:
    def __init__(self, text):
        self.text = text
        t = text.split(";")[0].strip()
        self.label = None
        self.op = None
        self.kind = None
        self.wr = set()
        self.rd = set()
        self.mf_ab = set()
        self.mf_c = set()
        self.passes = 0
        self.ws = 1
        self.store_data = set()
        self.wide_store = False
        self.lds_dma = False
        if not t:
            self.kind = "none"
            self.ws = 0
            return
        if t.endswith(":"):
            self.label = t[:-1]
            self.kind = "label"
            self.ws = 0
            return
        if t.startswith("."):
            self.kind = "none"
            self.ws = 0
            return
        parts = t.split(None, 1)
        self.op = op = parts[0]
        rest = parts[1] if len(parts) > 1 else ""
        extra = ""
        mq = re.search(r"\s((?:quad_perm:|row_half_mirror|row_mirror|row_shr|row_ror).*)$", rest)
        if mq:
            extra = mq.group(1)
            rest = rest[:mq.start()]
        toks = [x.strip() for x in rest.split(",")] if rest else []
        mods = ""
        if toks:
            last = toks[-1].split(None, 1)
            toks[-1] = last[0]
            mods = last[1] if len(last) > 1 else ""
        mods = (mods + " " + extra).strip()
        self.toks = toks
        self.mods = mods
        R = [_regs(x) for x in toks]
        if op.startswith("v_smfmac"):
            self.kind = "mfma"
            self.wr = R[0]
            self.mf_ab = R[1] | R[2] | R[3]
            self.mf_c = R[0]
            self.rd = self.mf_ab | self.mf_c
            self.passes = 8 if "32x32" in op else 4
        elif op.startswith("v_mfma"):
            self.kind = "mfma"
            self.wr = R[0]
            self.mf_ab = R[1] | R[2]
            self.mf_c = R[3]
            self.rd = self.mf_ab | self.mf_c
            self.passes = 8 if "32x32" in op else 4
        elif op.startswith("v_"):
            self.kind = "valu"
            if op.startswith("v_permlane"):
                self.wr = R[0] | R[1]
                self.rd = R[0] | R[1]
            elif op.startswith("v_cmp"):
                self.wr = R[0]
                self.rd = set().union(*R[1:])
            else:
                self.wr = set(R[0])
                self.rd = set().union(*R[1:]) if len(R) > 1 else set()
                if op.startswith("v_fmac") or op.startswith("v_dot2c") or "UNUSED_PRESERVE" in mods:
                    self.rd |= R[0]
                if "_co_" in op:
                    self.wr |= R[1]
        elif op.startswith("ds_"):
            self.kind = "ds"
            if op.startswith("ds_read") or op.startswith("ds_bpermute") or op.startswith("ds_swizzle"):
                self.wr = R[0]
                self.rd = set().union(*R[1:])
            else:
                self.rd = set().union(*R)
        elif op.startswith("buffer_") or op.startswith("global_"):
            self.kind = "vmem"
            if "load" in op and (" lds" in (" " + mods)):
                self.lds_dma = True
                self.rd = set().union(*R) | {"m0"}
            elif "load" in op:
                self.wr = R[0]
                self.rd = set().union(*R[1:])
            else:
                self.rd = set().union(*R)
                self.store_data = R[0] if op.startswith("buffer_") else R[1]
                self.wide_store = ("x3" in op or "x4" in op)
        elif op == "s_nop":
            self.kind = "nop"
            self.ws = int(toks[0], 0) + 1
        elif op.startswith("s_"):
            self.kind = "salu"
            if op.startswith("s_cmp") or op.startswith("s_cbranch") or op in (
                    "s_branch", "s_barrier", "s_waitcnt", "s_endpgm", "s_setprio", "s_sleep"):
                self.rd = set().union(*R) if R else set()
            else:
                self.wr = set(R[0]) if R else set()
                self.rd = set().union(*R[1:]) if len(R) > 1 else set()
                if "saveexec" in op:
                    self.wr |= {"exec"}
        else:
            raise ValueError("unknown instruction: " + text)


def _need(prod, cons):
    n = 0
    pw, cr, cw = prod.wr, cons.rd, cons.wr
    vw = {r for r in pw if r[0] in "va" and r != "vcc"}
    sw = {r for r in pw if r[0] == "s" or r == "vcc"}
    if prod.kind == "valu":
        isdot = prod.op.startswith("v_dot")
        if cons.kind == "mfma" and vw & cons.rd:
            n = max(n, 3 if isdot else 2)
        if prod.op in TRANS and cons.kind in ("valu", "mfma") and cons.op not in TRANS and vw & cr:
            n = max(n, 1)
        if prod.op in TRANS and cons.kind in ("vmem", "ds") and vw & cr:
            n = max(n, 1)
        if isdot and (vw & (cr | cw)):
            same = cons.op == prod.op
            if same:
                srcab = set().union(*[_regs(x) for x in cons.toks[1:3]])
                if vw & srcab:
                    n = max(n, 3)
            else:
                n = max(n, 3)
        if cons.kind == "valu":
            if cons.op.startswith("v_readfirstlane") or cons.op.startswith("v_readlane"):
                if vw & cr:
                    n = max(n, 1)
                if sw & cr:
                    n = max(n, 4)
            if cons.op.startswith("v_permlane") and vw & cr:
                n = max(n, 2)
            if ("dpp" in cons.op or "row_" in cons.mods or "quad_perm" in cons.mods) and vw & cr:
                n = max(n, 2)
            if sw & cr:
                n = max(n, 2)
            if ("sdwa" in prod.op or "op_sel" in prod.mods) and vw & (cr | cw):
                n = max(n, 1)
        if cons.kind == "vmem" and sw & cr:
            n = max(n, 5)
        if cons.kind == "salu" and sw & cr:
            n = max(n, 2)
    if prod.kind == "mfma":
        big = 12 if prod.passes == 8 else 8
        if cons.kind == "mfma":
            if pw & cons.mf_ab:
                n = max(n, big)
            if pw & cons.mf_c:
                if not (pw == cons.mf_c and prod.passes == cons.passes):
                    n = max(n, 10 if prod.passes == 8 else 6)
            elif pw & cons.wr:
                n = max(n, 10 if prod.passes == 8 else 6)
        elif cons.kind in ("valu", "ds", "vmem"):
            if pw & (cr | cw):
                n = max(n, big)
        if cons.kind == "valu" and prod.mf_c & cw:
            n = max(n, 7 if prod.passes == 8 else 3)
        if cons.kind in ("ds", "vmem") and prod.mf_c & cw:
            n = max(n, 7 if prod.passes == 8 else 3)
    if prod.kind == "salu" and "m0" in pw and cons.kind == "vmem" and cons.lds_dma:
        n = max(n, 1)
    if prod.kind == "vmem" and prod.wide_store and prod.store_data & cw:
        n = max(n, 2)
    return n


class Asm:
    def __init__(self, prof=False):
        self.lines = []
        self.prof = prof

    def stamp(self, i, real=False):
        if self.prof:
            if self.prof == 2 and not real:
                return
            op = "s_memrealtime" if real else "s_memtime"
            self.lines.append(f"{op} s[{64 + 2 * i}:{65 + 2 * i}]")
            if i == 0:
                self.lines.append("s_load_dword s94, s[0:1], 56")

    def dump(self, kidx, wave_sgpr, n=12):
        if not self.prof:
            return
        self.stamp(n - 1, real=True)
        self(f"""
s_waitcnt lgkmcnt(0)
s_mov_b64 exec, 1
s_lshr_b32 s94, s94, 9
s_and_b32 s94, s94, 15
s_lshl_b32 s94, s94, 20
s_add_u32 s88, s8, 0x4000000
s_addc_u32 s89, s9, 0
s_mov_b32 s90, 0x1000000
s_mov_b32 s91, 0x20000
s_lshl_b32 s92, s2, 4
s_add_u32 s92, s92, {wave_sgpr}
s_lshl_b32 s92, s92, 6
s_add_u32 s92, s92, s94
v_mov_b32 v0, s92
""")
        for i in (range(n) if self.prof == 1 else (0, n - 1)):
            self(f"v_mov_b32 v1, s{64 + 2 * i}")
            self(f"buffer_store_dword v1, v0, s[88:91], 0 offen offset:{4 * i}")

    def __call__(self, text):
        for ln in text.strip("\n").split("\n"):
            self.lines.append(ln.strip())

    def label(self, name):
        self.lines.append(name + ":")

    def raw(self, text):
        self.lines.append(text)


def fix_hazards(lines, verbose=False):
    MAXD = 20
    ins = [Ins(l) for l in lines]

    def maps():
        labels = {x.label: i for i, x in enumerate(ins) if x.label}
        preds = {}
        for i, x in enumerate(ins):
            if x.op and (x.op.startswith("s_cbranch") or x.op == "s_branch"):
                tgt = x.toks[0]
                if tgt in labels:
                    preds.setdefault(labels[tgt], []).append(i)
        return preds

    def scan(i, j, dist, depth, preds, via_branch):
        worst = 0
        k = j
        while k >= 0 and dist < MAXD:
            p = ins[k]
            if p.label is not None and k in preds and depth < 4:
                for b in preds[k]:
                    worst = max(worst, scan(i, b, dist, depth + 1, preds, True))
            if p.op in ("s_branch", "s_endpgm") and not (k == j and via_branch):
                break
            if p.op:
                need = _need(p, ins[i])
                if need > dist:
                    worst = max(worst, need - dist)
                dist += p.ws
            k -= 1
        return worst

    for rounds in range(20):
        changed = False
        preds = maps()
        i = 0
        while i < len(ins):
            x = ins[i]
            if x.op and x.kind not in ("nop",):
                short = scan(i, i - 1, 0, 0, preds, False)
                if short > 0:
                    if verbose:
                        print("hazard: +%d before: %s" % (short, x.text))
                    while short > 0:
                        n = min(short, 16)
                        ins.insert(i, Ins("s_nop %d" % (n - 1)))
                        short -= n
                        i += 1
                    changed = True
                    preds = maps()
            i += 1
        if not changed:
            break
    else:
        raise RuntimeError("hazard pass did not converge")
    out = []
    for x in ins:
        if x.label or x.text.startswith("."):
            out.append(x.text)
        else:
            out.append("    " + x.text)
    return out


def kernel_desc(name, vgpr, sgpr=96):
    vg = (vgpr + 3) // 4 * 4
    return f""".p2align 6
.amdhsa_kernel {name}
  .amdhsa_next_free_vgpr {vg}
  .amdhsa_next_free_sgpr {sgpr}
  .amdhsa_accum_offset {vg}
  .amdhsa_group_segment_fixed_size 0
  .amdhsa_kernarg_size 72
  .amdhsa_user_sgpr_count 2
  .amdhsa_user_sgpr_kernarg_segment_ptr 1
  .amdhsa_system_sgpr_workgroup_id_x 1
.end_amdhsa_kernel"""
```

```python
from asmlib import Asm
from gen_qkv import WS_OT, WS_QI, WS_KV, WS_WOT, OPT, lofs, vr, f32

ATT_VGPRS = {"A": 144, "B": 112}
ATT_LDS = {"A": 40960, "B": 163840}
NEGBIG = f32(-1e30)

VH, VM, AK1, AK2, AV, VO = 1, 2, 3, 4, 5, 6
Q1, Q2, K2, K1, VA = 8, 12, 14, 16, 20
VB = [24, 28]
E, P, O = 32, 40, 48
IDX = 47
SB = [64, 80]
NEG, CD, CF = 96, 112, 128
TS = 2560
PRIO_SWITCH = {"A": 7, "B": 13}


def gen_att(a, typ):
    L = lambda s: f"att{typ}_{s}"
    l0 = 0 if typ == "A" else 1
    for layer in (l0 + 2, l0):
        name = f"att{layer}_kernel"
        a.raw(f".globl {name}")
        a.raw(".p2align 8")
        a.raw(f".type {name},@function")
        a.label(name)
        a(f"s_mov_b32 s10, {lofs(layer)}")
        if layer != l0:
            a(f"s_branch {L('body')}")
    a.label(L("body"))
    kidx = 1 if typ == "A" else 3
    a.stamp(0, real=True)
    a.stamp(1)
    a(f"""
s_load_dwordx2 s[8:9], s[0:1], 64
s_load_dwordx2 s[6:7], s[0:1], {32 if typ == 'A' else 8}
s_cmp_ge_u32 s2, 256
s_cbranch_scc1 {L('end')}
s_and_b32 s11, s2, 7
s_lshl_b32 s11, s11, 2
s_lshr_b32 s28, s2, 3
s_and_b32 s28, s28, 3
s_add_u32 s11, s11, s28
s_lshr_b32 s12, s2, 5
v_lshrrev_b32 v1, 6, v0
v_and_b32 v0, 63, v0
v_readfirstlane_b32 s13, v1
s_mul_i32 s28, s11, 163840
s_add_u32 s28, s28, {WS_KV}
s_add_u32 s28, s28, s10
""")
    if typ == "A":
        a(f"""
s_mul_i32 s29, s12, {8 * TS}
s_add_u32 s28, s28, s29
s_sub_u32 s28, s28, {8 * TS}
""")
    NFIRST = 5 if typ == "A" else 2
    a(f"""
s_mov_b32 s18, {ATT_LDS[typ]}
s_mov_b32 s19, 0x20000
v_lshlrev_b32 v{AK1}, 4, v0
s_mul_i32 s30, s13, {NFIRST * 1024}
s_waitcnt lgkmcnt(0)
s_add_u32 s16, s8, s28
s_addc_u32 s17, s9, 0
s_cmp_eq_u32 s13, 8
s_cbranch_scc0 {L('comp')}
""")

    def issue_groups(n, lab, throttle):
        a(f"s_mov_b32 s31, {n}")
        a.label(L(lab))
        if throttle:
            a("s_waitcnt vmcnt(59)")
        a("s_mov_b32 m0, s30")
        a("s_sub_u32 s31, s31, 1")
        for j in range(4):
            a(f"buffer_load_dwordx4 v{AK1}, s[16:19], s30 offen offset:{1024 * j} lds")
        a("s_add_u32 s30, s30, 4096")
        a("s_cmp_lg_u32 s31, 0")
        a(f"s_cbranch_scc1 {L(lab)}")

    def prefetch():
        a(f"""
s_add_u32 s20, s8, {WS_WOT[0 if typ == 'A' else 1]}
s_addc_u32 s21, s9, 0
s_mov_b32 s22, 819200
s_mov_b32 s23, 0x20000
s_mov_b32 s24, s6
s_mov_b32 s25, s7
s_mov_b32 s26, 2457600
s_mov_b32 s27, 0x20000
s_lshr_b32 s28, s2, 3
v_lshlrev_b32 v8, 7, v0
s_lshl_b32 s29, s28, 15
""")
        for j in range(4):
            a(f"s_add_u32 s33, s29, {8192 * j}")
            a(f"buffer_load_dword v{10 + j}, v8, s[20:23], s33 offen")
        a("""
v_lshrrev_b32 v8, 4, v0
v_mul_u32_u24 v8, 3840, v8
v_and_b32 v9, 15, v0
v_lshl_add_u32 v8, v9, 7, v8
s_mul_i32 s29, s28, 76800
s_and_b32 s33, s2, 1
s_lshl_b32 s33, s33, 11
s_add_u32 s29, s29, s33
""")
        for j in range(5):
            a(f"s_add_u32 s33, s29, {4 * 3840 * j}")
            a(f"buffer_load_dword v{16 + j}, v8, s[24:27], s33 offen")

    if typ == "A":
        a("s_barrier")
        prefetch()
    else:
        issue_groups(11, "ld0", False)
        a.stamp(2)
        a("s_barrier")
        a.stamp(3)
        issue_groups(15, "ld1", True)
        a("s_waitcnt vmcnt(60)")
        a.stamp(4)
        a("s_barrier")
        a.stamp(5)
        issue_groups(10, "ld2", True)
        a("s_waitcnt vmcnt(0)")
        a.stamp(6)
        prefetch()
        a("s_barrier")
    a.dump(kidx, "s13")
    a.label(L("end"))
    a("s_endpgm")

    a.label(L("comp"))
    a("s_mov_b32 m0, s30")
    a(f"""
s_mul_i32 s28, s11, 81920
""")
    for j in range(min(NFIRST, 4)):
        a(f"buffer_load_dwordx4 v{AK1}, s[16:19], s30 offen offset:{1024 * j} lds")
    if NFIRST == 5:
        a("s_add_u32 s30, s30, 4096")
        a("s_mov_b32 m0, s30")
        a("s_nop 0")
        a(f"buffer_load_dwordx4 v{AK1}, s[16:19], s30 offen lds")
    a(f"""
s_mul_i32 s29, s12, {8 * 1280}
s_add_u32 s28, s28, s29
s_mul_i32 s29, s13, 1280
s_add_u32 s28, s28, s29
s_add_u32 s28, s28, {WS_QI}
s_add_u32 s28, s28, s10
s_mov_b32 s22, 1280
s_mov_b32 s23, 0x20000
v_lshlrev_b32 v7, 3, v0
v_add_u32 v7, 1024, v7
s_add_u32 s20, s8, s28
s_addc_u32 s21, s9, 0
buffer_load_dwordx4 {vr(Q1, 4)}, v{AK1}, s[20:23], 0 offen
buffer_load_dwordx2 {vr(Q2, 2)}, v7, s[20:23], 0 offen
s_mul_i32 s29, s11, {5 * 16384}
s_lshl_b32 s30, s12, 11
s_add_u32 s29, s29, s30
s_add_u32 s29, s29, {WS_OT}
s_add_u32 s29, s29, s10
s_sub_u32 s26, {5 * 16384}, s30
s_mov_b32 s27, 0x20000
s_add_u32 s24, s8, s29
s_addc_u32 s25, s9, 0
v_lshrrev_b32 v{VH}, 5, v0
v_and_b32 v{VM}, 31, v0
v_and_b32 v7, 0x33, v0
v_and_b32 v{AV}, 4, v0
v_lshl_add_u32 v7, v{AV}, 1, v7
v_and_b32 v{AV}, 8, v0
v_lshrrev_b32 v{AV}, 1, v{AV}
v_add_u32 v7, v{AV}, v7
v_lshlrev_b32 v{AK1}, 4, v7
v_and_b32 v7, 31, v7
v_lshlrev_b32 v{AK2}, 3, v7
v_add_u32 v{AK2}, 2304, v{AK2}
v_mul_u32_u24 v{AV}, 320, v{VH}
v_lshl_add_u32 v{AV}, v{VM}, 4, v{AV}
v_add_u32 v{AV}, 1024, v{AV}
s_lshl_b32 s28, s13, 8
v_lshlrev_b32 v{VO}, 14, v{VH}
v_lshl_add_u32 v{VO}, v{VM}, 3, v{VO}
v_add_u32 v{VO}, s28, v{VO}
s_mov_b32 s32, 0x000fffff
s_mov_b32 s33, 0x000fffff
s_mov_b32 s34, 32768
s_mov_b32 s35, 65536
s_mov_b32 s48, 0
v_mov_b32 v{IDX}, 0xdddddddd
s_mov_b32 s49, 99
s_cmp_lt_u32 s13, 4
s_cmov_b32 s49, {PRIO_SWITCH[typ]}
s_setprio 1
s_cbranch_scc0 {L('prio')}
s_setprio 2
""")
    a.label(L("prio"))
    a(f"v_cmp_{OPT.get('ones_cmp', 'eq')}_u32 s[40:41], 20, v{VM}")
    a(f"v_mov_b32 v{E}, 0")
    a(f"v_mov_b32 v{E + 1}, 0x3f803f80")
    for r in range(12):
        a(f"v_cndmask_b32 v{VA + r}, v{E}, v{E + 1}, s[40:41]")
    if typ == "A":
        a(f"""
s_mul_i32 s28, s13, {TS}
v_add_u32 v{AK1}, s28, v{AK1}
v_add_u32 v{AK2}, s28, v{AK2}
v_add_u32 v{AV}, s28, v{AV}
s_add_u32 s36, s13, 1
s_cmp_eq_u32 s12, 0
s_cselect_b32 s36, s36, 99
v_lshlrev_b32 v7, 3, v{VH}
v_sub_u32 v7, v{VM}, v7
v_mov_b32 v{E}, {NEGBIG}
v_mov_b32 v{E + 1}, 0
""")
        for j in range(16):
            g, r = j // 4, j % 4
            c = 16 * (g // 2) + 4 * (g % 2) + r
            sp = 40 + 2 * (j % 4)
            a(f"v_cmp_le_i32 s[{sp}:{sp + 1}], {c}, v7")
            if j % 4 == 3:
                for jj in range(j - 3, j + 1):
                    sq = 40 + 2 * (jj % 4)
                    a(f"v_cndmask_b32 v{CD + jj}, v{E}, v{E + 1}, s[{sq}:{sq + 1}]")
                    a(f"v_cndmask_b32 v{CF + jj}, v{E + 1}, v{E}, s[{sq}:{sq + 1}]")
    else:
        a("s_mov_b32 s36, 1")
        a("s_mov_b32 s37, 5")
    first = 8 * TS if typ == "A" else 0
    step = -TS if typ == "A" else TS

    def readK(off):
        a(f"ds_read_b128 {vr(K1, 4)}, v{AK1} offset:{off}")
        a(f"ds_read_b64 {vr(K2, 2)}, v{AK2} offset:{off}")

    def readV(off, vb):
        a("s_mov_b64 exec, s[32:33]")
        a(f"ds_read_b128 {vr(VA, 4)}, v{AV} offset:{off}")
        a(f"ds_read_b128 {vr(vb, 4)}, v{AV} offset:{off + 640}")
        a("s_mov_b64 exec, -1")

    def max16(dst, src, init=None):
        if init is None:
            a(f"v_max3_f32 v{dst}, v{src}, v{src + 1}, v{src + 2}")
            a(f"v_max_f32 v{dst}, v{dst}, v{src + 3}")
            lo = 4
        else:
            lo = 0
        for r in range(lo, 16, 2):
            a(f"v_max3_f32 v{dst}, v{dst}, v{src + r}, v{src + r + 1}")

    def zero_state():
        for r in range(16):
            a(f"v_mov_b32 v{O + r}, 0")
        for r in range(8):
            a(f"v_mov_b32 v{E + r}, 0")

    c0 = vr(CD, 16) if typ == "A" else "0"
    a.stamp(2)
    a("s_waitcnt vmcnt(0)")
    a("s_barrier")
    a.stamp(3)
    readK(first)
    a("s_waitcnt lgkmcnt(0)")
    a(f"v_mfma_f32_32x32x16_bf16 {vr(SB[0], 16)}, {vr(K1, 4)}, {vr(Q1, 4)}, {c0}")
    a(f"v_mfma_f32_32x32x8_bf16 {vr(SB[0], 16)}, {vr(K2, 2)}, {vr(Q2, 2)}, {vr(SB[0], 16)}")
    zero_state()
    max16(7, SB[0])
    a.label(L("have_m"))
    readK(first + step)
    readV(first, VB[0])
    a(f"""
v_mov_b32 v{P}, v7
v_permlane32_swap_b32 v{P}, v7
v_max_f32 v7, v7, v{P}
v_sub_f32 v7, 0, v7
""")
    for r in range(16):
        a(f"v_mov_b32 v{NEG + r}, v7")
    for r in range(16):
        a(f"v_add_f32 v{SB[0] + r}, v7, v{SB[0] + r}")
    if typ == "A":
        for r in range(16):
            a(f"v_add_f32 v{CF + r}, v7, v{CF + r}")
    a.stamp(4)

    def tile(t, koff, voff, cblk, last=False):
        cur, nxt = SB[t % 2], SB[(t + 1) % 2]
        if not last:
            a("s_waitcnt lgkmcnt(2)")
            a(f"v_mfma_f32_32x32x16_bf16 {vr(nxt, 16)}, {vr(K1, 4)}, {vr(Q1, 4)}, {vr(cblk, 16)}")
        for r in range(4):
            a(f"v_exp_f32 v{cur + r}, v{cur + r}")
        a(f"v_smfmac_f32_32x32x32_bf16 {vr(O, 16)}, {vr(VB[(t + 1) % 2], 4)}, {vr(E, 8)}, v{IDX}")
        for r in range(4):
            a(f"v_exp_f32 v{cur + 4 + r}, v{cur + 4 + r}")
        if not last:
            a(f"v_mfma_f32_32x32x8_bf16 {vr(nxt, 16)}, {vr(K2, 2)}, {vr(Q2, 2)}, {vr(nxt, 16)}")
        if koff is not None:
            readK(koff)
        for r in range(4):
            a(f"v_exp_f32 v{E + r}, v{cur + 8 + r}")
        a(f"s_waitcnt lgkmcnt({2 if koff is not None else 0})")
        a(f"v_smfmac_f32_32x32x32_bf16 {vr(O, 16)}, {vr(VA, 4)}, {vr(cur, 8)}, v{IDX}")
        if voff is not None:
            readV(voff, VB[(t + 1) % 2])
        for r in range(4):
            a(f"v_exp_f32 v{E + 4 + r}, v{cur + 12 + r}")

    if typ == "B":
        a("s_mov_b32 s38, 0")
        a.label(L("loop"))
        a(f"""
s_cmp_eq_u32 s38, s49
s_cbranch_scc0 {L('noprio')}
s_setprio 0
""")
        a.label(L("noprio"))
        a(f"""
s_cmp_eq_u32 s38, s36
s_cbranch_scc1 {L('bar')}
s_cmp_eq_u32 s38, s37
s_cbranch_scc0 {L('nobar')}
""")
        a.label(L("bar"))
        a("s_barrier")
        a.label(L("nobar"))
        for t in range(4):
            tile(t, (t + 2) * TS, (t + 1) * TS, NEG)
        a(f"""
v_add_u32 v{AK1}, {4 * TS}, v{AK1}
v_add_u32 v{AK2}, {4 * TS}, v{AK2}
v_add_u32 v{AV}, {4 * TS}, v{AV}
s_add_u32 s38, s38, 1
s_cmp_lt_u32 s38, 16
s_cbranch_scc1 {L('loop')}
""")
        tlast = 63
    else:
        for t in range(9):
            if t < 8:
                a(f"s_cmp_lg_u32 s36, {t + 1}")
                a(f"s_cbranch_scc1 {L('nofix%d' % t)}")
                a(f"s_call_b64 s[50:51], {L('fix')}")
                a.label(L("nofix%d" % t))
            if t == PRIO_SWITCH["A"]:
                a(f"s_cmp_eq_u32 s49, {t}")
                a(f"s_cbranch_scc0 {L('noprio')}")
                a("s_setprio 0")
                a.label(L("noprio"))
            koff = (8 - (t + 2)) * TS if t + 2 <= 8 else None
            voff = (8 - (t + 1)) * TS if t + 1 <= 8 else None
            tile(t, koff, voff, CF if t + 1 == 8 else NEG, last=(t == 8))
        tlast = 8
    a.stamp(5)
    a(f"v_smfmac_f32_32x32x32_bf16 {vr(O, 16)}, {vr(VB[tlast % 2], 4)}, {vr(E, 8)}, v{IDX}")
    a("s_waitcnt lgkmcnt(0)")
    a(f"""
v_mov_b32 v{P}, v{O + 8}
v_mov_b32 v{P + 1}, v{O + 8}
v_permlane32_swap_b32 v{P}, v{P + 1}
v_mul_f32 v{P + 2}, 0, v{P + 1}
""")
    for r in range(12):
        a(f"v_fmac_f32 v{P + 2}, 0, v{O + r}")
    a(f"""
v_rcp_f32 v{P + 1}, v{P + 1}
v_cmp_u_f32 vcc, v{P + 2}, v{P + 2}
s_cmp_eq_u32 s48, 0
s_cselect_b64 s[40:41], vcc, 0
s_cmp_lg_u64 s[40:41], 0
s_cbranch_scc1 {L('slow')}
""")
    for r in range(12):
        a(f"v_mul_f32 v{O + r}, v{P + 1}, v{O + r}")
    for r in range(6):
        a(f"v_cvt_pk_bf16_f32 v{E + r}, v{O + 2 * r}, v{O + 2 * r + 1}")
    a(f"""
buffer_store_dwordx2 {vr(E, 2)}, v{VO}, s[24:27], 0 offen {OPT.get('wt_att', 'sc0 sc1')}
buffer_store_dwordx2 {vr(E + 2, 2)}, v{VO}, s[24:27], s34 offen {OPT.get('wt_att', 'sc0 sc1')}
s_mov_b32 exec_hi, 0
buffer_store_dwordx2 {vr(E + 4, 2)}, v{VO}, s[24:27], s35 offen {OPT.get('wt_att', 'sc0 sc1')}
""")
    a.stamp(6)
    if a.prof == 1:
        a("s_waitcnt vmcnt(0)")
    a.stamp(7)
    a.dump(kidx, "s13")
    a("s_endpgm")

    a.label(L("slow"))
    a("s_mov_b32 s48, 1")
    a(f"v_mov_b32 v7, {NEGBIG}")
    zero_state()

    def slow_tile(off, c):
        readK(off)
        a("s_waitcnt lgkmcnt(0)")
        a(f"v_mfma_f32_32x32x16_bf16 {vr(SB[0], 16)}, {vr(K1, 4)}, {vr(Q1, 4)}, {c}")
        a(f"v_mfma_f32_32x32x8_bf16 {vr(SB[0], 16)}, {vr(K2, 2)}, {vr(Q2, 2)}, {vr(SB[0], 16)}")
        max16(7, SB[0], init=True)

    if typ == "B":
        a(f"""
s_mov_b32 s36, 99
s_mov_b32 s37, 99
s_mov_b32 s38, 0
v_subrev_u32 v{AV}, {64 * TS}, v{AV}
""")
        a.label(L("slow_loop"))
        a(f"v_subrev_u32 v{AK1}, {TS}, v{AK1}")
        a(f"v_subrev_u32 v{AK2}, {TS}, v{AK2}")
        slow_tile(0, "0")
        a(f"""
s_add_u32 s38, s38, 1
s_cmp_lt_u32 s38, 64
s_cbranch_scc1 {L('slow_loop')}
s_branch {L('have_m')}
""")
    else:
        for r in range(16):
            a(f"v_sub_f32 v{CF + r}, {NEGBIG}, v{CD + r}")
        for p in range(8, 0, -1):
            a(f"s_cmp_ge_u32 {p}, s36")
            a(f"s_cbranch_scc1 {L('sskip%d' % p)}")
            slow_tile((8 - p) * TS, vr(CF, 16) if p == 8 else "0")
            a.label(L("sskip%d" % p))
        slow_tile(8 * TS, vr(CD, 16))
        a(f"s_branch {L('have_m')}")
        a.label(L("fix"))
        a("s_nop 7")
        for r in range(16):
            a(f"v_mov_b32 v{NEG + r}, {NEGBIG}")
        for r in range(16):
            a(f"v_mov_b32 v{CF + r}, {NEGBIG}")
        a("s_nop 1")
        a("s_setpc_b64 s[50:51]")
```

```python
from asmlib import Asm
from gen_qkv import WS_X, WS_OT, WS_ST, WS_WOT, OPT, lofs, vr

OP_VGPRS = 96
OP_LDS = 158208
SLOT = 36864


def gen_op_stub(a, layer):
    name = f"op{layer}_kernel"
    a.raw(f".globl {name}")
    a.raw(".p2align 8")
    a.raw(f".type {name},@function")
    a.label(name)
    a(f"s_load_dwordx2 s[4:5], s[0:1], {0 if layer == 0 else 64}")
    a(f"s_mov_b32 s10, {WS_WOT[layer % 2]}")
    a("s_load_dwordx2 s[8:9], s[0:1], 64")
    a(f"s_load_dwordx2 s[44:45], s[0:1], {48 if layer == 3 else 64}")
    a(f"s_mov_b32 s48, {lofs(layer)}")
    a(f"s_mov_b32 s49, {0 if layer == 3 else lofs(layer + 1)}")
    a(f"s_mov_b32 s50, {lofs(layer + 1) if layer < 3 else 0}")
    a("s_branch op_body")


def gen_op_body(a):
    a.raw(".p2align 8")
    a.label("op_body")
    a.stamp(0, real=True)
    a.stamp(1)
    a(f"""
s_cmp_ge_u32 s2, 256
s_cbranch_scc1 op_end
s_and_b32 s11, s2, 7
s_lshl_b32 s11, s11, 2
s_lshr_b32 s28, s2, 3
s_and_b32 s28, s28, 3
s_add_u32 s11, s11, s28
s_lshr_b32 s12, s2, 5
v_lshrrev_b32 v1, 6, v0
v_and_b32 v0, 63, v0
v_readfirstlane_b32 s13, v1
s_mul_i32 s29, s12, 160
s_cmp_ge_u32 s13, 4
s_cbranch_scc0 op_cons
""")
    a(f"""
s_lshl_b32 s28, s11, 9
s_sub_u32 s18, 2621440, s28
s_add_u32 s28, s28, {WS_OT}
s_add_u32 s28, s28, s48
s_mov_b32 s19, 0x20000
s_mov_b32 s22, 102400
s_mov_b32 s23, 0x20000
s_mul_i32 s29, s12, 102400
s_add_u32 s29, s29, s10
s_sub_u32 s13, s13, 4
v_lshrrev_b32 v1, 5, v0
v_lshrrev_b32 v2, 3, v0
v_xor_b32 v2, v2, v1
v_and_b32 v2, 3, v2
v_and_b32 v3, 7, v0
v_lshlrev_b32 v1, 14, v1
v_lshl_add_u32 v1, v2, 7, v1
v_lshl_add_u32 v1, v3, 4, v1
s_lshl_b32 s30, s13, 17
v_add_u32 v1, s30, v1
v_lshlrev_b32 v2, 4, v0
s_lshl_b32 s30, s13, 12
s_mul_i32 s33, s13, 5120
s_add_u32 s31, s33, 16384
s_mov_b32 s32, 0
s_mov_b32 s36, 0
s_waitcnt lgkmcnt(0)
s_add_u32 s16, s8, s28
s_addc_u32 s17, s9, 0
s_add_u32 s20, s8, s29
s_addc_u32 s21, s9, 0
""")
    a.label("op_ld_loop")
    a(f"""
s_cmp_eq_u32 s36, 2
s_cbranch_scc0 op_ld_n2
""")
    a.stamp(2)
    a("s_waitcnt vmcnt(9)")
    a.stamp(3)
    a("s_barrier")
    a.label("op_ld_n2")
    a(f"""
s_cmp_eq_u32 s36, 4
s_cbranch_scc0 op_ld_issue
s_sub_u32 s30, s30, {4 * SLOT}
s_sub_u32 s31, s31, {4 * SLOT}
s_waitcnt vmcnt(18)
s_barrier
""")
    a.label("op_ld_issue")
    for j in range(5):
        if j < 4:
            a(f"s_add_u32 m0, s30, {j * 1024}")
            a(f"s_add_u32 s34, s32, {j * 32768}")
            a("buffer_load_dwordx4 v1, s[16:19], s34 offen lds")
        a(f"s_add_u32 m0, s31, {j * 1024}")
        a(f"s_add_u32 s35, s33, {j * 1024}")
        a(f"buffer_load_dwordx4 v2, s[20:23], s35 offen lds")
    a(f"""
s_add_u32 s30, s30, {SLOT}
s_add_u32 s31, s31, {SLOT}
s_add_u32 s32, s32, {32 * 16384}
s_add_u32 s33, s33, {128 * 160}
s_add_u32 s36, s36, 1
s_cmp_lt_u32 s36, 5
s_cbranch_scc1 op_ld_loop
""")
    a.stamp(4)
    a("""
s_waitcnt vmcnt(18)
s_barrier
s_waitcnt vmcnt(9)
s_barrier
s_waitcnt vmcnt(0)
""")
    a.stamp(5)
    a("s_barrier")
    a.stamp(6)
    if a.prof:
        a("s_add_u32 s13, s13, 4")
    a.dump(2, "s13")
    a.label("op_end")
    a("s_endpgm")

    AO, AW = 2, 3
    VX = 4
    VW, VR, VS = 5, 6, 7
    XR = 8
    ACC = 20
    F = [40, 64]
    a.label("op_cons")
    a(f"""
s_mul_i32 s30, s11, 81920
s_add_u32 s30, s30, s29
s_mov_b32 s26, 80800
s_mov_b32 s27, 0x20000
s_mov_b32 s42, 80800
s_mov_b32 s43, 0x20000
s_mul_i32 s28, s13, 20480
v_lshrrev_b32 v88, 2, v0
v_and_b32 v89, 3, v0
v_mul_u32_u24 v90, 1280, v88
v_lshl_add_u32 v90, v89, 4, v90
v_add_u32 v{VX}, s28, v90
s_mov_b32 s46, 0x33333333
s_mov_b32 s47, 0x33333333
s_waitcnt lgkmcnt(0)
s_add_u32 s48, s48, s30
s_add_u32 s49, s49, s30
s_add_u32 s24, s4, s48
s_addc_u32 s25, s5, 0
s_add_u32 s40, s44, s49
s_addc_u32 s41, s45, 0
""")
    if OPT.get("touch", 0):
        a(f"""
s_lshl_b32 s28, s11, 9
s_sub_u32 s18, 2621440, s28
s_add_u32 s28, s28, {WS_OT}
s_mov_b32 s19, 0x20000
s_add_u32 s16, s8, s28
s_addc_u32 s17, s9, 0
s_mul_i32 s28, s12, 20
s_mul_i32 s31, s13, 5
s_add_u32 s28, s28, s31
s_lshl_b32 s28, s28, 14
v_lshlrev_b32 v91, 14, v88
v_lshl_add_u32 v91, v89, 7, v91
s_mov_b64 exec, 0xfffff
buffer_load_dword v94, v91, s[16:19], s28 offen
s_mov_b64 exec, -1
""")
    a(f"""
buffer_load_dwordx4 {vr(XR, 4)}, v{VX}, s[24:27], 0 offen
buffer_load_dwordx4 {vr(XR + 4, 4)}, v{VX}, s[24:27], 0 offen offset:64
s_mov_b64 exec, s[46:47]
buffer_load_dwordx4 {vr(XR + 8, 4)}, v{VX}, s[24:27], 0 offen offset:128
s_mov_b64 exec, -1
s_add_u32 s50, s50, {WS_ST}
s_add_u32 s52, s8, s50
s_addc_u32 s53, s9, 0
s_mov_b32 s54, 0x20000
s_mov_b32 s55, 0x20000
s_lshl_b32 s28, s11, 12
s_lshl_b32 s31, s13, 10
s_add_u32 s28, s28, s31
s_lshl_b32 s31, s12, 3
s_add_u32 s28, s28, s31
v_lshlrev_b32 v{VS}, 6, v88
v_add_u32 v{VS}, s28, v{VS}
s_mul_i32 s28, s13, 2560
s_add_u32 s28, s28, {4 * SLOT}
v_mul_u32_u24 v90, 160, v88
v_lshl_add_u32 v{VR}, v89, 4, v90
v_add_u32 v{VR}, s28, v{VR}
v_lshl_add_u32 v90, v89, 3, v90
v_add_u32 v{AW}, 16384, v90
v_lshrrev_b32 v88, 4, v0
v_and_b32 v89, 1, v88
v_xor_b32 v89, s13, v89
v_lshlrev_b32 v{AO}, 9, v88
v_lshl_add_u32 v{AO}, v89, 7, v{AO}
v_and_b32 v89, 15, v0
v_lshl_add_u32 v{AO}, v89, 3, v{AO}
v_mul_u32_u24 v{VW}, 160, v89
v_lshl_add_u32 v{VW}, v88, 3, v{VW}
v_add_u32 v{VW}, s28, v{VW}
s_mov_b32 s37, 0
s_mov_b32 s38, 0x3f803f80
""")
    for r in range(20):
        a(f"v_mov_b32 v{ACC + r}, 0")

    def rd_list(Fb, ks):
        out = [f"ds_read_b64 {vr(Fb, 2)}, v{AO} offset:{ks * 4096}",
               f"ds_read_b64 {vr(Fb + 2, 2)}, v{AO} offset:{ks * 4096 + 2048}"]
        for t in range(5):
            for rho in range(2):
                out.append(f"ds_read_b64_tr_b16 {vr(Fb + 4 + 4 * t + 2 * rho, 2)}, v{AW} offset:{ks * 5120 + rho * 2560 + t * 32}")
        return out

    def mfma(Fb, t):
        acc = vr(ACC + 4 * t, 4)
        a(f"v_mfma_f32_16x16x32_bf16 {acc}, {vr(Fb + 4 + 4 * t, 4)}, {vr(Fb, 4)}, {acc}")

    def step(Fcur, nxt):
        issued = 0
        plan = [3, 3, 2, 2, 2]
        for t in range(5):
            need = 4 + 2 * t
            a(f"s_waitcnt lgkmcnt({12 - need + issued})")
            mfma(Fcur, t)
            for r in nxt[issued:issued + plan[t]]:
                a(r)
            issued += plan[t]

    a.stamp(2)
    a("s_barrier")
    a.stamp(3)
    for r in rd_list(F[0], 0):
        a(r)
    a.label("op_loop")
    for ks in range(3):
        step(F[ks % 2], rd_list(F[(ks + 1) % 2], ks + 1))
    a(f"""
s_add_u32 s37, s37, 1
s_mov_b32 s39, {SLOT}
s_cmp_eq_u32 s37, 4
s_cmov_b32 s39, {(-3 * SLOT) & 0xffffffff}
v_add_u32 v{AO}, s39, v{AO}
v_add_u32 v{AW}, s39, v{AW}
s_cmp_eq_u32 s37, 5
s_waitcnt lgkmcnt(0)
s_cbranch_scc1 op_last
s_barrier
""")
    nxt = rd_list(F[0], 0)
    for t in range(5):
        for r in nxt[[0, 4, 6, 8, 10][t]:[4, 6, 8, 10, 12][t]]:
            a(r)
        mfma(F[1], t)
    a("s_branch op_loop")
    a.label("op_last")
    a.stamp(4)
    for t in range(5):
        mfma(F[1], t)
    for t in range(5):
        a(f"v_cvt_pk_bf16_f32 v{40 + 2 * t}, v{ACC + 4 * t}, v{ACC + 4 * t + 1}")
        a(f"v_cvt_pk_bf16_f32 v{41 + 2 * t}, v{ACC + 4 * t + 2}, v{ACC + 4 * t + 3}")
        a(f"ds_write_b64 v{VW}, {vr(40 + 2 * t, 2)} offset:{32 * t}")
    a("s_waitcnt lgkmcnt(0)")
    for j in range(3):
        a(f"ds_read_b128 {vr(64 + 4 * j, 4)}, v{VR} offset:{64 * j}")
    a("v_mov_b32 v92, 0")
    a("v_mov_b32 v93, 0")
    a("s_waitcnt vmcnt(0)")
    for j in range(3):
        a(f"s_waitcnt lgkmcnt({2 - j})")
        if j == 2:
            a("s_mov_b64 exec, s[46:47]")
        for r in range(4):
            o, x = 64 + 4 * j + r, XR + 4 * j + r
            a(f"""
v_lshlrev_b32 v88, 16, v{o}
v_lshlrev_b32 v89, 16, v{x}
v_and_b32 v90, 0xffff0000, v{o}
v_and_b32 v91, 0xffff0000, v{x}
v_add_f32 v88, v88, v89
v_add_f32 v90, v90, v91
v_cvt_pk_bf16_f32 v{76 + 4 * j + r}, v88, v90
""")
        a(f"buffer_store_dwordx4 {vr(76 + 4 * j, 4)}, v{VX}, s[40:43], 0 offen offset:{64 * j} {OPT.get('wt_op', '')}")
        for r in range(4):
            a(f"v_dot2_f32_bf16 v92, v{76 + 4 * j + r}, s38, v92")
            a(f"v_dot2_f32_bf16 v93, v{76 + 4 * j + r}, v{76 + 4 * j + r}, v93")
    a(f"""
s_mov_b64 exec, -1
v_add_f32_dpp v92, v92, v92 quad_perm:[1,0,3,2] row_mask:0xf bank_mask:0xf
v_add_f32_dpp v93, v93, v93 quad_perm:[1,0,3,2] row_mask:0xf bank_mask:0xf
v_add_f32_dpp v92, v92, v92 quad_perm:[2,3,0,1] row_mask:0xf bank_mask:0xf
v_add_f32_dpp v93, v93, v93 quad_perm:[2,3,0,1] row_mask:0xf bank_mask:0xf
s_mov_b32 exec_lo, 0x11111111
s_mov_b32 exec_hi, 0x11111111
buffer_store_dwordx2 v[92:93], v{VS}, s[52:55], 0 offen {OPT.get('wt_op', '')}
""")
    a.stamp(6)
    if a.prof == 1:
        a("s_waitcnt vmcnt(0)")
    a.stamp(7)
    a.dump(2, "s13")
    a("s_endpgm")
```

```python
import struct
from asmlib import Asm

WS_X = 0x0
WS_OT = 0x280000
WS_QI = 0x500000
WS_KV = 0x780000
WS_ST = 0xC80000
WS_CS = [0xCA0000, 0xCA4000]
WS_WOT = [0xCB0000, 0xD80000]
OPT = {}
LSTRIDE = 0x1000000


def lofs(layer):
    return layer * LSTRIDE if OPT.get('fresh', 1) else 0

QI_BYTES = 32 * 81920
KV_BYTES = 32 * 163840
QSCALE = (20 ** -0.5) * 1.4426950408889634


def f32(x):
    return "0x%08x" % struct.unpack("<I", struct.pack("<f", x))[0]


def vr(base, n):
    return f"v[{base}:{base + n - 1}]"


QKV_VGPRS = 192
ACC = 64
F = [128, 144]
AA = 8
AB = 16
ST = 18
EO = 24
VH, VM, VF = 2, 3, 62
SC = 56
XO = 58
WO = 160


def gen_qkv_stub(a, layer):
    name = f"qkv{layer}_kernel"
    a.raw(f".globl {name}")
    a.raw(".p2align 8")
    a.raw(f".type {name},@function")
    a.label(name)
    a(f"s_load_dwordx2 s[4:5], s[0:1], {0 if layer == 0 else 64}")
    a(f"s_load_dwordx2 s[6:7], s[0:1], {8 if layer % 2 == 0 else 32}")
    a("s_load_dwordx2 s[8:9], s[0:1], 64")
    a(f"s_mov_b32 s10, {WS_CS[layer % 2]}")
    a(f"s_mov_b32 s45, {lofs(layer)}")
    if layer != 0:
        a("s_branch qkvf_body")


def split3(a, src, d0, d1, t0, t1):
    a(f"""
v_cvt_pk_bf16_f32 v{t0}, v{src}, v{src}
v_and_b32 v{t0}, 0xffff0000, v{t0}
v_sub_f32 v{t1}, v{src}, v{t0}
v_cvt_pk_bf16_f32 v{d0}, v{t0}, v{t1}
v_and_b32 v{t0}, 0xffff0000, v{d0}
v_sub_f32 v{t1}, v{t1}, v{t0}
v_mov_b32 v{t0}, 0
v_cvt_pk_bf16_f32 v{d1}, v{t1}, v{t0}
""")


def row_stats(a, vs, vq, dst_scale, dst_negmean, t):
    a(f"""
v_mul_f32 v{vs}, {f32(1.0 / 640)}, v{vs}
v_mul_f32 v{vq}, {f32(1.0 / 640)}, v{vq}
v_fma_f32 v{vq}, -v{vs}, v{vs}, v{vq}
v_max_f32 v{vq}, 0, v{vq}
v_cvt_pk_bf16_f32 v{t}, v{vs}, v{vq}
v_and_b32 v{vq}, 0xffff0000, v{t}
v_lshlrev_b32 v{vs}, 16, v{t}
v_add_f32 v{vq}, {f32(1e-5)}, v{vq}
v_cvt_pk_bf16_f32 v{vq}, v{vq}, v{vq}
v_and_b32 v{vq}, 0xffff0000, v{vq}
v_sqrt_f32 v{vq}, v{vq}
v_cvt_pk_bf16_f32 v{vq}, v{vq}, v{vq}
v_and_b32 v{vq}, 0xffff0000, v{vq}
v_rcp_f32 v{vq}, v{vq}
v_xor_b32 v{dst_negmean}, 0x80000000, v{vs}
v_mul_f32 v{dst_scale}, s38, v{vq}
""")


def x_operand(a, negmean, dst, t):
    a(f"""
v_mov_b32 v{t}, 0
v_cndmask_b32 v{t}, v{t}, v{negmean}, s[50:51]
v_lshrrev_b32 v{dst + 1}, 16, v{t}
v_or_b32 v{dst}, v{dst + 1}, v{t}
""")


def rank1(a, typ, first):
    for i in range(2):
        for j in range(2):
            acc = vr(ACC + (2 * i + j) * 16, 16)
            c = "0" if first else acc
            xa, wb = vr(XO + 2 * i, 2), vr(WO + 2 * j, 2)
            if typ == "qk":
                a(f"v_mfma_f32_32x32x8_bf16 {acc}, {wb}, {xa}, {c}")
            else:
                a(f"v_mfma_f32_32x32x8_bf16 {acc}, {xa}, {wb}, {c}")


def gen_qkv_body(a, slow):
    P = "qkvs" if slow else "qkvf"
    WT = OPT.get("wt", "sc0 sc1")
    if not slow:
        a.raw(".p2align 8")
    a.label(f"{P}_body")
    a.stamp(0, real=True)
    a.stamp(1)
    a(f"""
s_cmp_ge_u32 s2, 256
s_cbranch_scc1 {P}_end
s_and_b32 s28, s2, 7
s_lshr_b32 s29, s2, 3
s_lshr_b32 s11, s28, 1
s_lshl_b32 s11, s11, 2
s_and_b32 s30, s29, 3
s_add_u32 s11, s11, s30
s_and_b32 s12, s28, 1
s_lshl_b32 s12, s12, 3
s_lshr_b32 s30, s29, 2
s_add_u32 s12, s12, s30
s_cmp_ge_u32 s12, 15
s_cbranch_scc1 {P + '_aux' if slow else P + '_end'}
v_lshrrev_b32 v1, 6, v0
v_and_b32 v0, 63, v0
v_readfirstlane_b32 s13, v1
s_mul_i32 s28, s11, 163840
s_add_u32 s28, s28, s45
s_lshl_b32 s29, s12, 8
s_mov_b32 s18, 163840
s_mov_b32 s19, 0x20000
s_sub_u32 s22, 2457600, s29
s_mov_b32 s23, 0x20000
s_cmp_ge_u32 s13, 4
s_cbranch_scc0 {P}_cons
""")
    a("""
s_sub_u32 s13, s13, 4
v_lshrrev_b32 v1, 3, v0
s_lshl_b32 s30, s13, 3
v_add_u32 v1, s30, v1
v_lshrrev_b32 v2, 1, v1
v_xor_b32 v2, v2, v0
v_and_b32 v2, 7, v2
v_mul_u32_u24 v1, 1280, v1
v_lshl_add_u32 v1, v2, 4, v1
v_lshrrev_b32 v3, 4, v0
v_lshrrev_b32 v4, 2, v0
v_xor_b32 v4, v4, v3
v_and_b32 v4, 3, v4
v_and_b32 v5, 3, v0
s_lshl_b32 s30, s13, 2
v_add_u32 v3, s30, v3
v_mul_u32_u24 v2, 3840, v3
v_lshl_add_u32 v2, v4, 6, v2
v_lshl_add_u32 v2, v5, 4, v2
s_lshl_b32 s30, s13, 10
s_mov_b32 s31, 0
s_mov_b32 s32, 0
s_mov_b32 s33, 0
s_waitcnt lgkmcnt(0)
s_add_u32 s16, s4, s28
s_addc_u32 s17, s5, 0
s_add_u32 s20, s6, s29
s_addc_u32 s21, s7, 0
""")
    a.label(f"{P}_ld_loop")
    a(f"""
s_cmp_lt_u32 s33, 5
s_cbranch_scc0 {P}_ld_b
s_cmp_eq_u32 s33, 3
s_cbranch_scc0 {P}_ld_issue
""")
    a.stamp(2)
    a("s_waitcnt vmcnt(16)")
    a.stamp(3)
    a("s_barrier")
    a(f"s_branch {P}_ld_issue")
    a.label(f"{P}_ld_b")
    a("""
s_waitcnt vmcnt(24)
s_barrier
""")
    a.label(f"{P}_ld_issue")
    for j in range(4):
        a(f"s_add_u32 m0, s30, {j * 4096}")
        a(f"s_add_u32 s34, s31, {j * 40960}")
        a("buffer_load_dwordx4 v1, s[16:19], s34 offen lds")
        a(f"s_add_u32 m0, s30, {16384 + j * 4096}")
        a(f"s_add_u32 s35, s32, {j * 16 * 3840}")
        a("buffer_load_dwordx4 v2, s[20:23], s35 offen lds")
    a(f"""
s_add_u32 s30, s30, 32768
s_add_u32 s31, s31, 128
s_add_u32 s32, s32, {64 * 3840}
s_add_u32 s33, s33, 1
s_cmp_eq_u32 s33, 5
s_cselect_b32 s34, 163840, 0
s_sub_u32 s30, s30, s34
s_cmp_lt_u32 s33, 10
s_cbranch_scc1 {P}_ld_loop
""")
    a.stamp(4)
    a("""
s_waitcnt vmcnt(24)
s_barrier
s_waitcnt vmcnt(16)
s_barrier
s_waitcnt vmcnt(8)
s_barrier
s_waitcnt vmcnt(0)
""")
    a.stamp(5)
    a("s_barrier")
    a.stamp(6)
    if slow:
        a(f"""
s_load_dwordx2 s[56:57], s[0:1], 16
s_load_dwordx2 s[58:59], s[0:1], 40
s_mul_i32 s28, s11, 15
s_add_u32 s28, s28, s12
s_lshl_b32 s28, s28, 8
s_lshl_b32 s29, s13, 6
s_add_u32 s28, s28, s29
v_add_u32 v1, s28, v0
v_lshlrev_b32 v2, 4, v1
s_mov_b32 s29, 52429
v_mul_lo_u32 v3, v1, s29
v_lshrrev_b32 v3, 22, v3
v_mul_u32_u24 v4, 80, v3
v_sub_u32 v4, v1, v4
v_mul_u32_u24 v5, 6554, v4
v_lshrrev_b32 v5, 16, v5
v_mul_u32_u24 v6, 10, v5
v_sub_u32 v4, v4, v6
v_mul_u32_u24 v3, 160, v3
v_lshl_add_u32 v3, v4, 4, v3
s_mov_b32 s29, 102400
v_mul_lo_u32 v5, v5, s29
v_add_u32 v3, v3, v5
s_mov_b32 s29, 51200
v_cmp_gt_u32 s[46:47], s29, v1
s_mov_b32 s18, 819200
s_mov_b32 s22, 819200
s_add_u32 s24, s8, {WS_WOT[0]}
s_addc_u32 s25, s9, 0
s_mov_b32 s26, {WS_WOT[1] - WS_WOT[0] + 819200}
s_mov_b32 s27, 0x20000
s_mov_b32 s29, {WS_WOT[1] - WS_WOT[0]}
s_and_b64 exec, exec, s[46:47]
s_cbranch_execz {P}_end
s_waitcnt lgkmcnt(0)
s_mov_b32 s16, s56
s_mov_b32 s17, s57
s_mov_b32 s20, s58
s_mov_b32 s21, s59
buffer_load_dwordx4 v[8:11], v2, s[16:19], 0 offen
buffer_load_dwordx4 v[12:15], v2, s[20:23], 0 offen
s_waitcnt vmcnt(1)
buffer_store_dwordx4 v[8:11], v3, s[24:27], 0 offen
s_waitcnt vmcnt(1)
buffer_store_dwordx4 v[12:15], v3, s[24:27], s29 offen
""")
    if a.prof:
        a("s_add_u32 s13, s13, 4")
    a.dump(0, "s13")
    a.label(f"{P}_end")
    a("s_endpgm")

    a.label(f"{P}_cons")
    a(f"""
s_lshr_b32 s14, s13, 1
s_and_b32 s15, s13, 1
v_lshrrev_b32 v{VH}, 5, v0
v_and_b32 v{VM}, 31, v0
s_lshl_b32 s40, s11, 2
s_lshl_b32 s28, s14, 1
s_add_u32 s40, s40, s28
s_add_u32 s40, s40, s15
s_xor_b32 s41, s40, 1
s_mov_b32 s50, -1
s_mov_b32 s51, 0
s_mov_b32 s38, 1.0
s_cmp_lt_u32 s12, 5
s_cmov_b32 s38, {f32(QSCALE)}
s_mov_b32 s55, 0x20000
s_mov_b32 s54, 0x4000000
s_cmp_lt_u32 s12, 10
s_cselect_b64 s[62:63], -1, 0
v_and_b32 v4, 0x13, v0
v_and_b32 v5, 4, v0
v_lshl_add_u32 v4, v5, 1, v4
v_and_b32 v5, 8, v0
v_lshrrev_b32 v5, 1, v5
v_add_u32 v4, v4, v5
v_cndmask_b32 v{VF}, v{VM}, v4, s[62:63]
s_waitcnt lgkmcnt(0)
s_add_u32 s52, s8, {WS_ST}
s_addc_u32 s53, s9, 0
""")
    if OPT.get("touch", 0):
        a(f"""
s_mul_i32 s28, s11, 163840
s_add_u32 s16, s4, s28
s_addc_u32 s17, s5, 0
s_and_b32 s28, s12, 7
s_mul_i32 s28, s28, 24576
s_mul_i32 s29, s13, 6144
s_add_u32 s28, s28, s29
v_lshlrev_b32 v4, 7, v0
s_mov_b32 exec_hi, 0xffff
buffer_load_dword v50, v4, s[16:19], s28 offen
s_mov_b32 exec_hi, -1
""")
    if not slow:
        a(f"""
v_lshlrev_b32 v4, 6, v{VM}
v_lshl_add_u32 v4, v{VH}, 5, v4
s_lshl_b32 s28, s40, 11
s_lshl_b32 s29, s41, 11
s_add_u32 s28, s28, s45
s_add_u32 s29, s29, s45
buffer_load_dwordx4 v[32:35], v4, s[52:55], s28 offen
buffer_load_dwordx4 v[36:39], v4, s[52:55], s28 offen offset:16
buffer_load_dwordx4 v[40:43], v4, s[52:55], s29 offen
buffer_load_dwordx4 v[44:47], v4, s[52:55], s29 offen offset:16
v_lshlrev_b32 v5, 3, v{VF}
s_lshl_b32 s28, s12, 10
s_lshl_b32 s29, s15, 9
s_add_u32 s28, s28, s29
s_lshl_b32 s29, s14, 8
s_add_u32 s28, s28, s29
s_sub_u32 s29, s10, {WS_ST}
s_add_u32 s28, s28, s29
s_xor_b32 s29, s28, 256
buffer_load_dwordx2 {vr(WO, 2)}, v5, s[52:55], s28 offen
buffer_load_dwordx2 {vr(WO + 2, 2)}, v5, s[52:55], s29 offen
""")
    a(f"""
v_lshrrev_b32 v4, 1, v{VM}
v_xor_b32 v4, v4, v{VH}
v_and_b32 v4, 7, v4
v_lshlrev_b32 v4, 4, v4
v_lshl_add_u32 v4, v{VM}, 7, v4
s_lshl_b32 s28, s14, 13
s_lshl_b32 s29, s15, 12
s_add_u32 s30, s28, s29
s_xor_b32 s31, s30, 4096
v_add_u32 v{AA}, s30, v4
v_add_u32 v{AA + 4}, s31, v4
""")
    for i in range(2):
        for ks in range(1, 4):
            a(f"v_xor_b32 v{AA + 4 * i + ks}, {ks << 5}, v{AA + 4 * i}")
    a(f"""
v_lshrrev_b32 v4, 2, v0
v_and_b32 v4, 3, v4
v_lshl_add_u32 v5, v{VH}, 3, v4
v_lshlrev_b32 v5, 8, v5
v_and_b32 v6, 16, v0
v_lshl_add_u32 v5, v6, 1, v5
v_and_b32 v6, 3, v0
v_lshlrev_b32 v6, 3, v6
v_and_b32 v7, 1, v0
v_lshlrev_b32 v7, 4, v7
v_and_b32 v48, 2, v0
v_lshl_add_u32 v7, v48, 2, v7
v_cndmask_b32 v6, v6, v7, s[62:63]
v_add_u32 v5, v5, v6
s_lshl_b32 s28, s15, 1
s_add_u32 s28, s28, s14
v_xor_b32 v4, s28, v4
v_lshl_add_u32 v5, v4, 6, v5
v_add_u32 v{AB}, 16384, v5
v_xor_b32 v{AB + 1}, 64, v{AB}
s_mov_b32 s36, 0x3f803f80
s_mov_b32 s27, 0x20000
s_mov_b32 s37, 0
""")
    if slow:
        for r in range(6):
            a(f"v_mov_b32 v{ST + r}, 0")
        for r in range(64):
            a(f"v_mov_b32 v{ACC + r}, 0")
    a(f"""
s_cmp_ge_u32 s12, 10
s_cbranch_scc1 {P}_v_setup
""")

    def fast_stats():
        a("s_waitcnt vmcnt(2)")
        for i in range(2):
            b = 32 + 8 * i
            a(f"""
v_add_f32 v{b}, v{b}, v{b + 2}
v_add_f32 v{b + 1}, v{b + 1}, v{b + 3}
v_add_f32 v{b + 4}, v{b + 4}, v{b + 6}
v_add_f32 v{b + 5}, v{b + 5}, v{b + 7}
v_add_f32 v{b}, v{b}, v{b + 4}
v_add_f32 v{b + 1}, v{b + 1}, v{b + 5}
v_mov_b32 v{b + 2}, v{b}
v_mov_b32 v{b + 3}, v{b + 1}
v_permlane32_swap_b32 v{b + 2}, v{b}
v_permlane32_swap_b32 v{b + 3}, v{b + 1}
v_add_f32 v{b}, v{b}, v{b + 2}
v_add_f32 v{b + 1}, v{b + 1}, v{b + 3}
""")
            row_stats(a, b, b + 1, SC + i, b + 2, b + 3)
            x_operand(a, b + 2, XO + 2 * i, b + 3)
        a("s_waitcnt vmcnt(0)")

    def slow_stats(typ):
        a(f"""
v_add_f32 v4, v{ST}, v{ST + 1}
v_add_f32 v5, v{ST + 2}, v{ST + 3}
v_add_f32 v6, v{ST + 4}, v{ST + 5}
v_mov_b32 v7, v4
v_mov_b32 v8, v5
v_mov_b32 v9, v6
v_permlane32_swap_b32 v7, v4
v_permlane32_swap_b32 v8, v5
v_permlane32_swap_b32 v9, v6
v_add_f32 v4, v4, v7
v_add_f32 v5, v5, v8
v_add_f32 v6, v6, v9
""")
        row_stats(a, 4, 5, SC, 8, 7)
        split3(a, 6, WO, WO + 1, 9, 10)
        a(f"""
s_lshl_b32 s28, s14, 8
s_lshl_b32 s29, s15, 7
s_add_u32 s28, s28, s29
v_lshl_add_u32 v7, v{VM}, 2, s28
ds_write_b32 v7, v{SC} offset:4096
ds_write_b32 v7, v8 offset:4608
s_lshl_b32 s28, s15, 9
s_lshl_b32 s29, s14, 8
s_add_u32 s28, s28, s29
v_lshl_add_u32 v9, v{VF}, 3, s28
ds_write_b64 v9, {vr(WO, 2)} offset:5120
s_lshl_b32 s29, s12, 10
s_add_u32 s29, s29, {WS_CS[0] - WS_ST}
s_cmp_lg_u32 s11, 0
s_cbranch_scc1 {P}_nocs_{typ}
buffer_store_dwordx2 {vr(WO, 2)}, v9, s[52:55], s29 offen
""")
        a.label(f"{P}_nocs_{typ}")
        a(f"""
s_waitcnt lgkmcnt(0)
s_barrier
v_xor_b32 v7, 128, v7
v_xor_b32 v9, 256, v9
ds_read_b32 v{SC + 1}, v7 offset:4096
ds_read_b32 v10, v7 offset:4608
ds_read_b64 {vr(WO + 2, 2)}, v9 offset:5120
""")
        x_operand(a, 8, XO, 11)
        a("s_waitcnt lgkmcnt(0)")
        x_operand(a, 10, XO + 2, 11)
        rank1(a, typ, False)

    a(f"""
s_mov_b32 s42, 81920
s_mov_b32 s43, 1280
s_mov_b32 s44, 1024
s_mov_b32 s28, {WS_QI}
s_mov_b32 s26, {QI_BYTES}
s_cmp_ge_u32 s12, 5
s_cmov_b32 s42, 163840
s_cmov_b32 s43, 2560
s_cmov_b32 s44, 2304
s_cmov_b32 s28, {WS_KV}
s_cmov_b32 s26, {KV_BYTES}
s_cselect_b32 s29, 5, 0
s_add_u32 s28, s28, s45
s_add_u32 s24, s8, s28
s_addc_u32 s25, s9, 0
s_sub_u32 s29, s12, s29
s_mul_i32 s40, s40, s43
s_mul_i32 s41, s41, s43
s_lshl_b32 s29, s29, 4
s_lshl_b32 s28, s15, 3
s_add_u32 s29, s29, s28
v_lshlrev_b32 v6, 4, v{VM}
v_lshlrev_b32 v7, 3, v{VM}
v_add_u32 v7, s44, v7
v_mov_b32 v51, 0x7fffff00
""")
    for j in range(2):
        a(f"s_xor_b32 s28, s14, {j}")
        a("s_lshl_b32 s28, s28, 2")
        a("s_add_u32 s28, s28, s29")
        for gp in range(2):
            e = EO + 2 * (2 * j + gp)
            sm = 56 + 2 * ((2 * j + gp) % 2) if False else None
            mask = [f"s[{x}:{x + 1}]" for x in (46, 48, 56, 58)][2 * j + gp]
            a(f"""
s_add_u32 s30, s28, {2 * gp}
v_add_u32 v4, s30, v{VH}
v_mul_u32_u24 v5, 205, v4
v_lshrrev_b32 v5, 10, v5
v_mul_u32_u24 v48, 5, v5
v_sub_u32 v4, v4, v48
v_cmp_eq_u32 {mask}, 2, v4
v_cmp_lt_u32 s[60:61], 2, v4
v_lshlrev_b32 v5, 1, v5
v_mul_lo_u32 v5, v5, s42
v_add_u32 v49, v5, v7
v_cndmask_b32 v{e + 1}, v51, v49, {mask}
v_mov_b32 v48, 0
v_mov_b32 v49, s42
v_cndmask_b32 v48, v48, v49, s[60:61]
v_add_u32 v5, v5, v48
v_subrev_u32 v48, 3, v4
v_cndmask_b32 v4, v4, v48, s[60:61]
v_lshl_add_u32 v4, v4, 9, v6
v_add_u32 v4, v4, v5
v_cndmask_b32 v{e}, v4, v51, {mask}
""")
    if not slow:
        fast_stats()
        rank1(a, "qk", True)
    gen_mainloop(a, P, "qk", slow, None)
    if slow:
        slow_stats("qk")
    a.stamp(5)
    T = 164
    n = 0
    a("s_add_u32 s28, s40, s42")
    a("s_add_u32 s29, s41, s42")
    for i in range(2):
        for j in range(2):
            for gp in range(2):
                t = T + 12 * (n % 2)
                n += 1
                e = EO + 2 * (2 * j + gp)
                mask = [f"s[{x}:{x + 1}]" for x in (46, 48, 56, 58)][2 * j + gp]
                for r in range(8):
                    a(f"v_mul_f32 v{t + r}, v{SC + i}, v{ACC + (2 * i + j) * 16 + 8 * gp + r}")
                for r in range(4):
                    a(f"v_cvt_pk_bf16_f32 v{t + 8 + r}, v{t + 2 * r}, v{t + 2 * r + 1}")
                a(f"buffer_store_dwordx4 {vr(t + 8, 4)}, v{e}, s[24:27], s{40 + i} offen {WT}")
                a(f"s_cmp_eq_u64 {mask}, 0")
                a(f"s_cbranch_scc1 {P}_ns{n}")
                a(f"buffer_store_dwordx2 {vr(t + 8, 2)}, v{e + 1}, s[24:27], s{40 + i} offen {WT}")
                a(f"buffer_store_dwordx2 {vr(t + 10, 2)}, v{e + 1}, s[24:27], s{28 + i} offen {WT}")
                a.label(f"{P}_ns{n}")
    a.stamp(6)
    if a.prof == 1:
        a("s_waitcnt vmcnt(0)")
    a.stamp(7)
    a.dump(0, "s13")
    a("s_endpgm")

    a.label(f"{P}_v_setup")
    a(f"""
s_add_u32 s28, s45, {WS_KV}
s_add_u32 s24, s8, s28
s_addc_u32 s25, s9, 0
s_mov_b32 s26, {KV_BYTES}
s_mul_i32 s40, s40, 2560
s_mul_i32 s41, s41, 2560
s_sub_u32 s29, s12, 10
s_lshl_b32 s29, s29, 7
s_lshl_b32 s28, s15, 6
s_add_u32 s29, s29, s28
s_mov_b32 s42, 163840
v_mul_u32_u24 v6, 320, v{VH}
v_add_u32 v6, 1024, v6
s_lshl_b32 s28, s13, 8
v_lshl_add_u32 v{EO + 2}, v{VM}, 2, s28
v_lshl_add_u32 v{EO + 3}, v{VH}, 4, s28
""")
    for j in range(2):
        a(f"""
s_xor_b32 s28, s14, {j}
s_lshl_b32 s28, s28, 5
s_add_u32 s28, s28, s29
v_add_u32 v4, s28, v{VM}
v_mul_u32_u24 v5, 3277, v4
v_lshrrev_b32 v5, 16, v5
v_mul_u32_u24 v48, 20, v5
v_sub_u32 v4, v4, v48
v_lshl_add_u32 v4, v4, 4, v6
v_mul_lo_u32 v5, v5, s42
v_add_u32 v{EO + j}, v5, v4
""")
    AV = 160

    def scale_exchange():
        a(f"ds_write_b32 v{EO + 2}, v{SC}")
        a(f"ds_write_b32 v{EO + 2}, v{SC + 1} offset:128")
        a("s_waitcnt lgkmcnt(0)")
        for i in range(2):
            for g in range(4):
                a(f"ds_read_b128 {vr(AV + 16 * i + 4 * g, 4)}, v{EO + 3} offset:{128 * i + 32 * g}")

    if not slow:
        fast_stats()
        rank1(a, "v", True)
    gen_mainloop(a, P, "v", slow, None if slow else scale_exchange)
    if slow:
        slow_stats("v")
        scale_exchange()
    a.stamp(5)
    a("s_waitcnt lgkmcnt(0)")
    n = 0
    for i in range(2):
        for j in range(2):
            for gp in range(2):
                t = 32 + 12 * (n % 2)
                n += 1
                for r in range(8):
                    a(f"v_mul_f32 v{t + r}, v{AV + 16 * i + 8 * gp + r}, v{ACC + (2 * i + j) * 16 + 8 * gp + r}")
                for r in range(4):
                    a(f"v_cvt_pk_bf16_f32 v{t + 8 + r}, v{t + 2 * r}, v{t + 2 * r + 1}")
                a(f"buffer_store_dwordx4 {vr(t + 8, 4)}, v{EO + j}, s[24:27], s{40 + i} offen offset:{640 * gp} {OPT.get('wt_v', WT)}")
    a.stamp(6)
    if a.prof == 1:
        a("s_waitcnt vmcnt(0)")
    a.stamp(7)
    a.dump(0, "s13")
    a("s_endpgm")

    if slow:
        gen_aux(a, P)


def gen_aux(a, P):
    a.label(f"{P}_aux")
    a(f"""
s_load_dwordx2 s[56:57], s[0:1], 32
s_cmp_eq_u32 s11, 15
s_cbranch_scc1 {P}_end
v_lshrrev_b32 v1, 4, v0
v_and_b32 v2, 15, v0
v_mul_u32_u24 v3, 3840, v1
v_lshl_add_u32 v3, v2, 4, v3
s_lshl_b32 s29, s11, 8
s_sub_u32 s22, 2457600, s29
s_mov_b32 s23, 0x20000
s_waitcnt lgkmcnt(0)
s_add_u32 s20, s56, s29
s_addc_u32 s21, s57, 0
""")
    for n in range(20):
        a(f"s_mov_b32 s30, {n * 32 * 3840}")
        a(f"buffer_load_dwordx4 {vr(16 + 4 * n, 4)}, v3, s[20:23], s30 offen")
    for r in range(8):
        a(f"v_mov_b32 v{8 + r}, 0")
    for n in range(20):
        a(f"s_waitcnt vmcnt({19 - n})")
        for r in range(4):
            a(f"v_lshlrev_b32 v4, 16, v{16 + 4 * n + r}")
            a(f"v_and_b32 v5, 0xffff0000, v{16 + 4 * n + r}")
            a(f"v_add_f32 v{8 + 2 * r}, v{8 + 2 * r}, v4")
            a(f"v_add_f32 v{9 + 2 * r}, v{9 + 2 * r}, v5")
    a(f"""
v_lshlrev_b32 v4, 5, v0
ds_write_b128 v4, v[8:11]
ds_write_b128 v4, v[12:15] offset:16
s_waitcnt lgkmcnt(0)
s_barrier
v_readfirstlane_b32 s13, v0
s_cmp_ge_u32 s13, 128
s_cbranch_scc1 {P}_end
v_lshlrev_b32 v4, 2, v0
""")
    for half in range(4):
        for n in range(8):
            a(f"ds_read_b32 v{16 + 8 * half + n}, v4 offset:{512 * (8 * half + n)}")
        a("s_waitcnt lgkmcnt(0)")
    for n in range(1, 32):
        a(f"v_add_f32 v16, v16, v{16 + n}")
    split3(a, 16, 8, 9, 10, 11)
    a(f"""
s_add_u32 s52, s8, {WS_CS[1]}
s_addc_u32 s53, s9, 0
s_mov_b32 s54, 15360
s_mov_b32 s55, 0x20000
s_lshl_b32 s29, s11, 10
v_lshlrev_b32 v4, 3, v0
buffer_store_dwordx2 v[8:9], v4, s[52:55], s29 offen
s_endpgm
""")


def read_list(Fb, ks):
    return [f"ds_read_b128 {vr(Fb, 4)}, v{AA + ks}",
            f"ds_read_b64_tr_b16 {vr(Fb + 8, 2)}, v{AB} offset:{ks * 4096}",
            f"ds_read_b64_tr_b16 {vr(Fb + 10, 2)}, v{AB} offset:{ks * 4096 + 1024}",
            f"ds_read_b64_tr_b16 {vr(Fb + 12, 2)}, v{AB + 1} offset:{ks * 4096}",
            f"ds_read_b64_tr_b16 {vr(Fb + 14, 2)}, v{AB + 1} offset:{ks * 4096 + 1024}",
            f"ds_read_b128 {vr(Fb + 4, 4)}, v{AA + 4 + ks}"]


def gen_step(a, typ, Fb, slow, nxt, waits=True, mid=None):
    n = 0
    for i in range(2):
        for j in range(2):
            if waits and n < 3:
                a(f"s_waitcnt lgkmcnt({[3, 3, 4][n] if nxt else [3, 1, 0][n]})")
            acc = vr(ACC + (2 * i + j) * 16, 16)
            xa, wb = vr(Fb + 4 * i, 4), vr(Fb + 8 + 4 * j, 4)
            if typ == "qk":
                a(f"v_mfma_f32_32x32x16_bf16 {acc}, {wb}, {xa}, {acc}")
            else:
                a(f"v_mfma_f32_32x32x16_bf16 {acc}, {xa}, {wb}, {acc}")
            if mid and n == 0:
                mid()
            for r in nxt[2 * n:2 * n + 2]:
                a(r)
            n += 1
    if slow:
        for r in range(4):
            a(f"v_dot2_f32_bf16 v{ST + r % 2}, v{Fb + r}, s36, v{ST + r % 2}")
            a(f"v_dot2_f32_bf16 v{ST + 2 + r % 2}, v{Fb + r}, v{Fb + r}, v{ST + 2 + r % 2}")
            a(f"v_dot2_f32_bf16 v{ST + 4 + r % 2}, v{Fb + 8 + r}, s36, v{ST + 4 + r % 2}")


def gen_mainloop(a, P, typ, slow, before_last):
    a.stamp(2)
    a("s_barrier")
    a.stamp(3)
    for r in read_list(F[0], 0):
        a(r)
    a.label(f"{P}_loop_{typ}")
    for ks in range(3):
        gen_step(a, typ, F[ks % 2], slow, read_list(F[(ks + 1) % 2], ks + 1))
    a(f"""
s_add_u32 s37, s37, 1
s_mov_b32 s39, 32768
s_cmp_eq_u32 s37, 5
s_cmov_b32 s39, {(-131072) & 0xffffffff}
""")
    for r in range(10):
        a(f"v_add_u32 v{AA + r}, s39, v{AA + r}")
    a(f"""
s_cmp_eq_u32 s37, 10
s_waitcnt lgkmcnt(0)
s_cbranch_scc1 {P}_last_{typ}
""")
    gen_step(a, typ, F[1], slow, read_list(F[0], 0), waits=False, mid=lambda: a("s_barrier"))
    a(f"s_branch {P}_loop_{typ}")
    a.label(f"{P}_last_{typ}")
    a.stamp(4)
    if before_last:
        before_last()
    gen_step(a, typ, F[1], slow, [], waits=False)
```

```python
import sys
from asmlib import Asm, fix_hazards, kernel_desc
from gen_qkv import *
from gen_op import *
from gen_att import *

HDR = open("interleave_layers__sliding_block__mha_block__prompt.s.ref").read().split("; Override launch")[0]

def build(verbose=False, prof=False):
    launches = []
    for l in range(4):
        launches.append(f"; @launch kernel=qkv{l}_kernel grid=(256,1,1) block=(512,1,1) lds=163840")
        t = "A" if l % 2 == 0 else "B"
        launches.append(f"; @launch kernel=att{l}_kernel grid=(256,1,1) block=(576,1,1) lds={ATT_LDS[t]}")
        launches.append(f"; @launch kernel=op{l}_kernel grid=(256,1,1) block=(512,1,1) lds={OP_LDS}")
    a = Asm(prof)
    gen_qkv_stub(a, 0)
    gen_qkv_body(a, True)
    for l in range(1, 4):
        gen_qkv_stub(a, l)
    gen_qkv_body(a, False)
    gen_att(a, "A")
    gen_att(a, "B")
    for l in range(4):
        gen_op_stub(a, l)
    gen_op_body(a)
    body = fix_hazards(a.lines, verbose)
    out = [HDR.rstrip("\n")] + launches
    out.append('.amdgcn_target "amdgcn-amd-amdhsa--gfx950"')
    out.append(".text")
    out += body
    out.append('.section .rodata,"a"')
    for l in range(4):
        out.append(kernel_desc(f"qkv{l}_kernel", QKV_VGPRS))
        out.append(kernel_desc(f"op{l}_kernel", OP_VGPRS))
        out.append(kernel_desc(f"att{l}_kernel", ATT_VGPRS["AB"[l % 2]]))
    return "\n".join(out) + "\n"

if __name__ == "__main__":
    import ast
    import gen_att as GA
    for arg in sys.argv[2:]:
        if "=" in arg:
            kx, vx = arg.split("=", 1)
            try:
                vx = ast.literal_eval(vx)
            except Exception:
                pass
            GA.OPT[kx] = vx
    if "prioB" in GA.OPT: GA.PRIO_SWITCH["B"] = GA.OPT["prioB"]
    if "prioA" in GA.OPT: GA.PRIO_SWITCH["A"] = GA.OPT["prioA"]
    dst = sys.argv[1] if len(sys.argv) > 1 else "interleave_layers__sliding_block__mha_block__prompt.s"
    open(dst, "w").write(build(verbose="-v" in sys.argv, prof=(1 if "-p" in sys.argv else 2 if "-t" in sys.argv else 0)))
```

```python
from asmlib import Asm
from gen_qkv import WS_OT, WS_QI, WS_KV, WS_WOT, WS_CS, OPT, lofs, vr, f32
from gen_opq import WS_CNT, OA, OSING

ATT_VGPRS = {"A": 144, "B": 112}
ATT_LDS = {"A": 40960, "B": 163840}
NEGBIG = f32(-1e30)

VH, VM, AK1, AK2, AV, VO = 1, 2, 3, 4, 5, 6
Q1, Q2, K2, K1, VA = 8, 12, 14, 16, 20
VB = [24, 28]
E, P, O = 32, 40, 48
IDX = 47
VO2 = 46
SB = [64, 80]
NEG, CD, CF = 96, 112, 128
TS = 2560
PRIO_SWITCH = {"A": 7, "B": 13}


def gen_att(a, typ):
    L = lambda s: f"att{typ}_{s}"
    l0 = 0 if typ == "A" else 1
    for layer in (l0 + 2, l0):
        name = f"fus{layer}_kernel"
        a.raw(f".globl {name}")
        a.raw(".p2align 8")
        a.raw(f".type {name},@function")
        a.label(name)
        a(f"s_load_dwordx2 s[4:5], s[0:1], {0 if layer == 0 else 64}")
        a(f"s_load_dwordx2 s[52:53], s[0:1], {48 if layer == 3 else 64}")
        a(f"s_mov_b32 s10, {lofs(layer)}")
        a(f"s_mov_b32 s54, {(1 if layer == 0 else 0) + (2 if layer == 3 else 0)}")
        a(f"s_mov_b32 s57, {WS_CNT + 65536 * layer}")
        a(f"s_mov_b32 s58, {lofs(layer + 1) if layer < 3 else 0}")
        if layer != l0:
            a(f"s_branch {L('body')}")
    a.label(L("body"))
    LB = OA if typ == "A" else 0
    a(f"s_mov_b32 s55, {WS_WOT[l0]}")
    a(f"s_mov_b32 s56, {WS_CS[1 - l0]}")
    a(f"s_mov_b32 s59, {l0}")
    kidx = 1 if typ == "A" else 3
    a.stamp(0, real=True)
    a.stamp(1)
    a(f"""
s_load_dwordx2 s[8:9], s[0:1], 64
s_load_dwordx2 s[6:7], s[0:1], {32 if typ == 'A' else 8}
s_cmp_ge_u32 s2, 256
s_cbranch_scc1 {L('end')}
s_and_b32 s11, s2, 7
s_lshl_b32 s11, s11, 2
s_lshr_b32 s28, s2, 3
s_and_b32 s28, s28, 3
s_add_u32 s11, s11, s28
s_lshr_b32 s12, s2, 5
v_lshrrev_b32 v1, 6, v0
v_and_b32 v0, 63, v0
v_readfirstlane_b32 s13, v1
s_mul_i32 s28, s11, 163840
s_add_u32 s28, s28, {WS_KV}
s_add_u32 s28, s28, s10
""")
    if typ == "A":
        a(f"""
s_mul_i32 s29, s12, {8 * TS}
s_add_u32 s28, s28, s29
s_sub_u32 s28, s28, {8 * TS}
""")
    NFIRST = 5 if typ == "A" else 2
    a(f"""
s_mov_b32 s18, {ATT_LDS[typ]}
s_mov_b32 s19, 0x20000
v_lshlrev_b32 v{AK1}, 4, v0
s_mul_i32 s30, s13, {NFIRST * 1024}
s_waitcnt lgkmcnt(0)
s_add_u32 s16, s8, s28
s_addc_u32 s17, s9, 0
s_cmp_eq_u32 s13, 8
s_cbranch_scc0 {L('comp')}
""")

    def issue_groups(n, lab, throttle):
        a(f"s_mov_b32 s31, {n}")
        a.label(L(lab))
        if throttle:
            a("s_waitcnt vmcnt(59)")
        a("s_mov_b32 m0, s30")
        a("s_sub_u32 s31, s31, 1")
        for j in range(4):
            a(f"buffer_load_dwordx4 v{AK1}, s[16:19], s30 offen offset:{1024 * j} lds")
        a("s_add_u32 s30, s30, 4096")
        a("s_cmp_lg_u32 s31, 0")
        a(f"s_cbranch_scc1 {L(lab)}")

    def prefetch(wo=True):
        a(f"""
s_add_u32 s20, s8, {WS_WOT[0 if typ == 'A' else 1]}
s_addc_u32 s21, s9, 0
s_mov_b32 s22, 819200
s_mov_b32 s23, 0x20000
s_mov_b32 s24, s6
s_mov_b32 s25, s7
s_mov_b32 s26, 2457600
s_mov_b32 s27, 0x20000
s_lshr_b32 s28, s2, 3
v_lshlrev_b32 v8, 7, v0
s_lshl_b32 s29, s28, 15
""")
        for j in range(4 if wo else 0):
            a(f"s_add_u32 s33, s29, {8192 * j}")
            a(f"buffer_load_dword v{10 + j}, v8, s[20:23], s33 offen")
        a("""
v_lshrrev_b32 v8, 4, v0
v_mul_u32_u24 v8, 3840, v8
v_and_b32 v9, 15, v0
v_lshl_add_u32 v8, v9, 7, v8
s_mul_i32 s29, s28, 76800
s_and_b32 s33, s2, 1
s_lshl_b32 s33, s33, 11
s_add_u32 s29, s29, s33
""")
        for j in range(5):
            a(f"s_add_u32 s33, s29, {4 * 3840 * j}")
            a(f"buffer_load_dword v{16 + j}, v8, s[24:27], s33 offen")

    if typ == "A":
        a("""
s_mul_i32 s29, s12, 102400
s_add_u32 s29, s29, s55
s_add_u32 s16, s8, s29
s_addc_u32 s17, s9, 0
s_mov_b32 s18, 102400
s_mov_b32 s30, 0
""")
        nw0 = OPT.get("wo_early", 12)
        if nw0:
            issue_groups(nw0, "ldw0", False)
        a("s_barrier")
        issue_groups(25 - nw0, "ldw1", True)
        prefetch(False)
        a("s_barrier")
        a("s_barrier")
        a("s_waitcnt vmcnt(0)")
        a("s_barrier")
    else:
        issue_groups(5, "ld0", False)
        pass
        a("s_barrier")
        pass
        issue_groups(21, "ld1", True)
        a("s_waitcnt vmcnt(60)")
        pass
        a("s_barrier")
        pass
        issue_groups(10, "ld2", True)
        a("s_waitcnt vmcnt(0)")
        pass
        prefetch()
        a("s_barrier")
    a.label(L("end"))
    a("s_endpgm")

    a.label(L("comp"))
    a(f"s_add_u32 m0, s30, {LB}")
    a(f"""
s_mul_i32 s28, s11, 81920
""")
    for j in range(min(NFIRST, 4)):
        a(f"buffer_load_dwordx4 v{AK1}, s[16:19], s30 offen offset:{1024 * j} lds")
    if NFIRST == 5:
        a("s_add_u32 s30, s30, 4096")
        a(f"s_add_u32 m0, s30, {LB}")
        a("s_nop 0")
        a(f"buffer_load_dwordx4 v{AK1}, s[16:19], s30 offen lds")
    a(f"""
s_mul_i32 s29, s12, {8 * 1280}
s_add_u32 s28, s28, s29
s_mul_i32 s29, s13, 1280
s_add_u32 s28, s28, s29
s_add_u32 s28, s28, {WS_QI}
s_add_u32 s28, s28, s10
s_mov_b32 s22, 1280
s_mov_b32 s23, 0x20000
v_lshlrev_b32 v7, 3, v0
v_add_u32 v7, 1024, v7
s_add_u32 s20, s8, s28
s_addc_u32 s21, s9, 0
buffer_load_dwordx4 {vr(Q1, 4)}, v{AK1}, s[20:23], 0 offen
buffer_load_dwordx2 {vr(Q2, 2)}, v7, s[20:23], 0 offen
s_add_u32 s29, s10, {WS_OT}
s_mov_b32 s26, 2621440
s_mov_b32 s27, 0x20000
s_add_u32 s24, s8, s29
s_addc_u32 s25, s9, 0
v_lshrrev_b32 v{VH}, 5, v0
v_and_b32 v{VM}, 31, v0
v_and_b32 v7, 0x33, v0
v_and_b32 v{AV}, 4, v0
v_lshl_add_u32 v7, v{AV}, 1, v7
v_and_b32 v{AV}, 8, v0
v_lshrrev_b32 v{AV}, 1, v{AV}
v_add_u32 v7, v{AV}, v7
v_lshlrev_b32 v{AK1}, 4, v7
v_and_b32 v7, 31, v7
v_lshlrev_b32 v{AK2}, 3, v7
v_add_u32 v{AK2}, 2304, v{AK2}
v_mul_u32_u24 v{AV}, 320, v{VH}
v_lshl_add_u32 v{AV}, v{VM}, 4, v{AV}
v_add_u32 v{AV}, 1024, v{AV}
s_lshl_b32 s28, s12, 8
s_lshl_b32 s29, s13, 5
s_add_u32 s28, s28, s29
v_add_u32 v{VO2}, s28, v{VM}
v_lshlrev_b32 v{VO2}, 3, v{VO2}
v_lshlrev_b32 v{VO}, 3, v{VH}
v_lshl_add_u32 v{VO}, v{VO2}, 1, v{VO}
s_mov_b32 s32, 0x000fffff
s_mov_b32 s33, 0x000fffff
s_lshl_b32 s39, s11, 16
s_add_u32 s34, s39, 32768
s_lshl_b32 s35, s11, 14
s_add_u32 s35, s35, {OSING}
s_mov_b32 s48, 0
v_mov_b32 v{IDX}, 0xdddddddd
s_mov_b32 s49, 99
s_cmp_lt_u32 s13, 4
s_cmov_b32 s49, {PRIO_SWITCH[typ]}
s_setprio 1
s_cbranch_scc0 {L('prio')}
s_setprio 2
""")
    a.label(L("prio"))
    a(f"v_cmp_{OPT.get('ones_cmp', 'eq')}_u32 s[40:41], 20, v{VM}")
    a(f"v_mov_b32 v{E}, 0")
    a(f"v_mov_b32 v{E + 1}, 0x3f803f80")
    for r in range(12):
        a(f"v_cndmask_b32 v{VA + r}, v{E}, v{E + 1}, s[40:41]")
    if typ == "A":
        a(f"""
s_mul_i32 s28, s13, {TS}
s_add_u32 s28, s28, {LB}
v_add_u32 v{AK1}, s28, v{AK1}
v_add_u32 v{AK2}, s28, v{AK2}
v_add_u32 v{AV}, s28, v{AV}
s_add_u32 s36, s13, 1
s_cmp_eq_u32 s12, 0
s_cselect_b32 s36, s36, 99
v_lshlrev_b32 v7, 3, v{VH}
v_sub_u32 v7, v{VM}, v7
v_mov_b32 v{E}, {NEGBIG}
v_mov_b32 v{E + 1}, 0
""")
        for j in range(16):
            g, r = j // 4, j % 4
            c = 16 * (g // 2) + 4 * (g % 2) + r
            sp = 40 + 2 * (j % 4)
            a(f"v_cmp_le_i32 s[{sp}:{sp + 1}], {c}, v7")
            if j % 4 == 3:
                for jj in range(j - 3, j + 1):
                    sq = 40 + 2 * (jj % 4)
                    a(f"v_cndmask_b32 v{CD + jj}, v{E}, v{E + 1}, s[{sq}:{sq + 1}]")
                    a(f"v_cndmask_b32 v{CF + jj}, v{E + 1}, v{E}, s[{sq}:{sq + 1}]")
    else:
        a("s_mov_b32 s36, 1")
        a("s_mov_b32 s37, 5")
    first = 8 * TS if typ == "A" else 0
    step = -TS if typ == "A" else TS

    def readK(off):
        a(f"ds_read_b128 {vr(K1, 4)}, v{AK1} offset:{off}")
        a(f"ds_read_b64 {vr(K2, 2)}, v{AK2} offset:{off}")

    def readV(off, vb):
        a("s_mov_b64 exec, s[32:33]")
        a(f"ds_read_b128 {vr(VA, 4)}, v{AV} offset:{off}")
        a(f"ds_read_b128 {vr(vb, 4)}, v{AV} offset:{off + 640}")
        a("s_mov_b64 exec, -1")

    def max16(dst, src, init=None):
        if init is None:
            a(f"v_max3_f32 v{dst}, v{src}, v{src + 1}, v{src + 2}")
            a(f"v_max_f32 v{dst}, v{dst}, v{src + 3}")
            lo = 4
        else:
            lo = 0
        for r in range(lo, 16, 2):
            a(f"v_max3_f32 v{dst}, v{dst}, v{src + r}, v{src + r + 1}")

    def zero_state():
        for r in range(16):
            a(f"v_mov_b32 v{O + r}, 0")
        for r in range(8):
            a(f"v_mov_b32 v{E + r}, 0")

    c0 = vr(CD, 16) if typ == "A" else "0"
    pass
    a("s_waitcnt vmcnt(0)")
    a("s_barrier")
    pass
    readK(first)
    a("s_waitcnt lgkmcnt(0)")
    a(f"v_mfma_f32_32x32x16_bf16 {vr(SB[0], 16)}, {vr(K1, 4)}, {vr(Q1, 4)}, {c0}")
    a(f"v_mfma_f32_32x32x8_bf16 {vr(SB[0], 16)}, {vr(K2, 2)}, {vr(Q2, 2)}, {vr(SB[0], 16)}")
    zero_state()
    max16(7, SB[0])
    a.label(L("have_m"))
    readK(first + step)
    readV(first, VB[0])
    a(f"""
v_mov_b32 v{P}, v7
v_permlane32_swap_b32 v{P}, v7
v_max_f32 v7, v7, v{P}
v_sub_f32 v7, 0, v7
""")
    for r in range(16):
        a(f"v_mov_b32 v{NEG + r}, v7")
    for r in range(16):
        a(f"v_add_f32 v{SB[0] + r}, v7, v{SB[0] + r}")
    if typ == "A":
        for r in range(16):
            a(f"v_add_f32 v{CF + r}, v7, v{CF + r}")
    pass

    def tile(t, koff, voff, cblk, last=False):
        cur, nxt = SB[t % 2], SB[(t + 1) % 2]
        if not last:
            a("s_waitcnt lgkmcnt(2)")
            a(f"v_mfma_f32_32x32x16_bf16 {vr(nxt, 16)}, {vr(K1, 4)}, {vr(Q1, 4)}, {vr(cblk, 16)}")
        for r in range(4):
            a(f"v_exp_f32 v{cur + r}, v{cur + r}")
        a(f"v_smfmac_f32_32x32x32_bf16 {vr(O, 16)}, {vr(VB[(t + 1) % 2], 4)}, {vr(E, 8)}, v{IDX}")
        for r in range(4):
            a(f"v_exp_f32 v{cur + 4 + r}, v{cur + 4 + r}")
        if not last:
            a(f"v_mfma_f32_32x32x8_bf16 {vr(nxt, 16)}, {vr(K2, 2)}, {vr(Q2, 2)}, {vr(nxt, 16)}")
        if koff is not None:
            readK(koff)
        for r in range(4):
            a(f"v_exp_f32 v{E + r}, v{cur + 8 + r}")
        a(f"s_waitcnt lgkmcnt({2 if koff is not None else 0})")
        a(f"v_smfmac_f32_32x32x32_bf16 {vr(O, 16)}, {vr(VA, 4)}, {vr(cur, 8)}, v{IDX}")
        if voff is not None:
            readV(voff, VB[(t + 1) % 2])
        for r in range(4):
            a(f"v_exp_f32 v{E + 4 + r}, v{cur + 12 + r}")

    if typ == "B":
        a("s_mov_b32 s38, 0")
        a.label(L("loop"))
        a(f"""
s_cmp_eq_u32 s38, s49
s_cbranch_scc0 {L('noprio')}
s_setprio 0
""")
        a.label(L("noprio"))
        a(f"""
s_cmp_eq_u32 s38, s36
s_cbranch_scc1 {L('bar')}
s_cmp_eq_u32 s38, s37
s_cbranch_scc0 {L('nobar')}
""")
        a.label(L("bar"))
        a("s_barrier")
        a.label(L("nobar"))
        for t in range(4):
            tile(t, (t + 2) * TS, (t + 1) * TS, NEG)
        a(f"""
v_add_u32 v{AK1}, {4 * TS}, v{AK1}
v_add_u32 v{AK2}, {4 * TS}, v{AK2}
v_add_u32 v{AV}, {4 * TS}, v{AV}
s_add_u32 s38, s38, 1
s_cmp_lt_u32 s38, 16
s_cbranch_scc1 {L('loop')}
""")
        tlast = 63
    else:
        for t in range(9):
            if t < 8:
                a(f"s_cmp_lg_u32 s36, {t + 1}")
                a(f"s_cbranch_scc1 {L('nofix%d' % t)}")
                a(f"s_call_b64 s[50:51], {L('fix')}")
                a.label(L("nofix%d" % t))
            if t == PRIO_SWITCH["A"]:
                a(f"s_cmp_eq_u32 s49, {t}")
                a(f"s_cbranch_scc0 {L('noprio')}")
                a("s_setprio 0")
                a.label(L("noprio"))
            koff = (8 - (t + 2)) * TS if t + 2 <= 8 else None
            voff = (8 - (t + 1)) * TS if t + 1 <= 8 else None
            tile(t, koff, voff, CF if t + 1 == 8 else NEG, last=(t == 8))
        tlast = 8
    pass
    a(f"v_smfmac_f32_32x32x32_bf16 {vr(O, 16)}, {vr(VB[tlast % 2], 4)}, {vr(E, 8)}, v{IDX}")
    a("s_waitcnt lgkmcnt(0)")
    a(f"""
v_mov_b32 v{P}, v{O + 8}
v_mov_b32 v{P + 1}, v{O + 8}
v_permlane32_swap_b32 v{P}, v{P + 1}
v_mul_f32 v{P + 2}, 0, v{P + 1}
""")
    for r in range(12):
        a(f"v_fmac_f32 v{P + 2}, 0, v{O + r}")
    a(f"""
v_rcp_f32 v{P + 1}, v{P + 1}
v_cmp_u_f32 vcc, v{P + 2}, v{P + 2}
s_cmp_eq_u32 s48, 0
s_cselect_b64 s[40:41], vcc, 0
s_cmp_lg_u64 s[40:41], 0
s_cbranch_scc1 {L('slow')}
""")
    for r in range(12):
        a(f"v_mul_f32 v{O + r}, v{P + 1}, v{O + r}")
    for r in range(6):
        a(f"v_cvt_pk_bf16_f32 v{E + r}, v{O + 2 * r}, v{O + 2 * r + 1}")
    a(f"""
buffer_store_dwordx2 {vr(E, 2)}, v{VO}, s[24:27], s39 offen {OPT.get('wt_att', 'sc0 sc1')}
buffer_store_dwordx2 {vr(E + 2, 2)}, v{VO}, s[24:27], s34 offen {OPT.get('wt_att', 'sc0 sc1')}
s_mov_b32 exec_hi, 0
buffer_store_dwordx2 {vr(E + 4, 2)}, v{VO2}, s[24:27], s35 offen {OPT.get('wt_att', 'sc0 sc1')}
""")
    a("s_branch opq_entry")

    a.label(L("slow"))
    a("s_mov_b32 s48, 1")
    a(f"v_mov_b32 v7, {NEGBIG}")
    zero_state()

    def slow_tile(off, c):
        readK(off)
        a("s_waitcnt lgkmcnt(0)")
        a(f"v_mfma_f32_32x32x16_bf16 {vr(SB[0], 16)}, {vr(K1, 4)}, {vr(Q1, 4)}, {c}")
        a(f"v_mfma_f32_32x32x8_bf16 {vr(SB[0], 16)}, {vr(K2, 2)}, {vr(Q2, 2)}, {vr(SB[0], 16)}")
        max16(7, SB[0], init=True)

    if typ == "B":
        a(f"""
s_mov_b32 s36, 99
s_mov_b32 s37, 99
s_mov_b32 s38, 0
v_subrev_u32 v{AV}, {64 * TS}, v{AV}
""")
        a.label(L("slow_loop"))
        a(f"v_subrev_u32 v{AK1}, {TS}, v{AK1}")
        a(f"v_subrev_u32 v{AK2}, {TS}, v{AK2}")
        slow_tile(0, "0")
        a(f"""
s_add_u32 s38, s38, 1
s_cmp_lt_u32 s38, 64
s_cbranch_scc1 {L('slow_loop')}
s_branch {L('have_m')}
""")
    else:
        for r in range(16):
            a(f"v_sub_f32 v{CF + r}, {NEGBIG}, v{CD + r}")
        for p in range(8, 0, -1):
            a(f"s_cmp_ge_u32 {p}, s36")
            a(f"s_cbranch_scc1 {L('sskip%d' % p)}")
            slow_tile((8 - p) * TS, vr(CF, 16) if p == 8 else "0")
            a.label(L("sskip%d" % p))
        slow_tile(8 * TS, vr(CD, 16))
        a(f"s_branch {L('have_m')}")
        a.label(L("fix"))
        a("s_nop 7")
        for r in range(16):
            a(f"v_mov_b32 v{NEG + r}, {NEGBIG}")
        for r in range(16):
            a(f"v_mov_b32 v{CF + r}, {NEGBIG}")
        a("s_nop 1")
        a("s_setpc_b64 s[50:51]")
```

```python
from asmlib import Asm
import gen_qkv as Q
from gen_qkv import WS_X, WS_OT, WS_QI, WS_KV, WS_ST, QI_BYTES, KV_BYTES, QSCALE, OPT, vr, f32

WS_CNT = 0xE60000
FUSED_VGPRS = 168
OA = 102400
PSTR = 336
PHALF = 64 * PSTR
QA = 81920
CH = 20480
OSING = 0x200000
WT = "sc0 sc1"
LD = "sc1"


def signal(a, lab, st_base, nline):
    a(f"""
s_cmp_lg_u32 s13, 0
s_cbranch_scc1 {lab}_sdone
s_add_u32 s60, s8, s57
s_addc_u32 s61, s9, 0
s_mov_b32 s62, 65536
s_mov_b32 s63, 0x20000
v_lshlrev_b32 v1, 7, v0
v_mov_b32 v167, 1
s_mov_b32 exec_lo, {hex((1 << nline) - 1)}
s_mov_b32 exec_hi, 0
buffer_store_dword v167, v1, s[60:63], {st_base} offen sc0 sc1
s_mov_b64 exec, -1
""")
    a.label(f"{lab}_sdone")


def wait_flags(a, lab, own_line, nword):
    a(f"""
s_cmp_lg_u32 s13, 0
s_cbranch_scc1 {lab}_done
s_add_u32 s60, s8, s57
s_addc_u32 s61, s9, 0
s_mov_b32 s62, 65536
s_mov_b32 s63, 0x20000
v_lshlrev_b32 v1, 2, v0
s_mov_b32 exec_lo, {hex((1 << nword) - 1)}
s_mov_b32 exec_hi, 0
s_mov_b32 s3, 0
""")
    a.label(f"{lab}_poll")
    a(f"""
buffer_load_dword v167, v1, s[60:63], {own_line} offen sc0 sc1
s_add_u32 s3, s3, 1
s_waitcnt vmcnt(0)
v_cmp_eq_u32 vcc, 0, v167
s_cmp_gt_u32 s3, 0x40000
s_cbranch_scc1 {lab}_out
s_cbranch_vccnz {lab}_poll
""")
    a.label(f"{lab}_out")
    a("s_mov_b64 exec, -1")
    a.label(f"{lab}_done")


def gen_opq(a):
    VA1, VA2, AW0, AW1, PW, PR1, PR2 = 4, 5, 6, 7, 8, 9, 10
    VXI, VXO, VS = 11, 13, 15
    XR, ACC, AR, WS0 = 16, 24, 44, 84
    a.raw(".p2align 6")
    a.label("opq_entry")
    a("""
s_mov_b64 exec, -1
s_setprio 0
s_barrier
""")
    a.stamp(2)
    a(f"""
s_and_b32 s14, s13, 3
s_lshr_b32 s15, s13, 2
v_lshlrev_b32 v2, 4, v0
s_and_b32 s39, s15, s59
s_cmp_eq_u32 s39, 0
s_cbranch_scc1 opq_nowo1
s_mul_i32 s29, s12, 102400
s_add_u32 s29, s29, s55
s_add_u32 s20, s8, s29
s_addc_u32 s21, s9, 0
s_mov_b32 s22, 102400
s_mov_b32 s23, 0x20000
s_mul_i32 s38, s14, 25600
""")

    def lin_dma(n0, n1, srd, base):
        n = n0
        while n < n1:
            a(f"s_add_u32 s31, {base}, {1024 * n}")
            a("s_mov_b32 m0, s31")
            k = min(4, n1 - n)
            for j in range(k):
                a(f"buffer_load_dwordx4 v2, {srd}, s31 offen offset:{1024 * j} lds")
            n += k

    lin_dma(0, 8, "s[20:23]", "s38")
    a("s_waitcnt vmcnt(8)")
    a("s_branch opq_e2")
    a.label("opq_nowo1")
    a("s_waitcnt vmcnt(0)")
    a.label("opq_e2")
    a("""
s_barrier
s_lshl_b32 s28, s12, 12
s_lshl_b32 s29, s11, 2
s_add_u32 s28, s28, s29
""")
    a.stamp(3)
    signal(a, "opq_s1", "s28", 32)
    a("""
s_cmp_eq_u32 s39, 0
s_cbranch_scc1 opq_nowo2
""")
    lin_dma(8, 25, "s[20:23]", "s38")
    a.label("opq_nowo2")
    a(f"""
s_lshr_b32 s28, s11, 1
s_lshl_b32 s28, s28, 3
s_add_u32 s28, s28, s12
s_mul_i32 s28, s28, {CH}
s_and_b32 s29, s11, 1
s_mul_i32 s29, s29, 10240
s_add_u32 s28, s28, s29
s_mul_i32 s29, s11, 81920
s_mul_i32 s30, s12, 160
s_add_u32 s29, s29, s30
s_add_u32 s30, s28, s10
s_mov_b32 s26, 10240
s_bitcmp1_b32 s54, 0
s_cselect_b64 s[34:35], -1, 0
s_cmov_b32 s30, s29
s_cmov_b32 s26, 80800
s_add_u32 s24, s4, s30
s_addc_u32 s25, s5, 0
s_mov_b32 s27, 0x20000
s_add_u32 s30, s28, s58
s_mov_b32 s42, 10240
s_bitcmp1_b32 s54, 1
s_cselect_b64 s[36:37], -1, 0
s_cmov_b32 s30, s29
s_cmov_b32 s42, 80800
s_add_u32 s40, s52, s30
s_addc_u32 s41, s53, 0
s_mov_b32 s43, 0x20000
v_lshrrev_b32 v44, 3, v0
v_and_b32 v45, 7, v0
s_and_b32 s28, s13, 1
s_lshl_b32 s29, s28, 2
v_lshrrev_b32 v46, 1, v44
v_add_u32 v46, s29, v46
v_xor_b32 v46, v46, v45
v_xor_b32 v47, s28, v45
v_add_u32 v47, 8, v47
s_lshl_b32 s29, s13, 3
v_add_u32 v48, s29, v44
v_mul_u32_u24 v49, 1280, v48
v_lshl_add_u32 v50, v46, 4, v49
v_lshl_add_u32 v51, v47, 4, v49
s_mul_i32 s29, s13, 1280
v_lshl_add_u32 v52, v0, 4, s29
v_lshlrev_b32 v53, 5, v44
v_lshl_add_u32 v53, v45, 4, v53
s_add_u32 s29, s29, 1024
v_add_u32 v53, s29, v53
v_cndmask_b32 v{VXI}, v52, v50, s[34:35]
v_cndmask_b32 v{VXI + 1}, v53, v51, s[34:35]
v_cndmask_b32 v{VXO}, v52, v50, s[36:37]
v_cndmask_b32 v{VXO + 1}, v53, v51, s[36:37]
s_mov_b32 s46, 0x03030303
s_mov_b32 s47, 0x03030303
buffer_load_dwordx4 {vr(XR, 4)}, v{VXI}, s[24:27], 0 offen
s_mov_b64 exec, s[46:47]
buffer_load_dwordx4 {vr(XR + 4, 4)}, v{VXI + 1}, s[24:27], 0 offen
s_mov_b64 exec, -1
v_mul_u32_u24 v49, {PSTR}, v48
v_add_u32 v49, {OA}, v49
v_lshl_add_u32 v{PR1}, v46, 5, v49
v_lshl_add_u32 v{PR2}, v47, 5, v49
s_lshl_b32 s29, s11, 3
s_add_u32 s29, s29, s12
s_lshl_b32 s29, s29, 9
v_lshl_add_u32 v{VS}, v48, 3, s29
s_add_u32 s28, s58, {WS_ST}
s_add_u32 s48, s8, s28
s_addc_u32 s49, s9, 0
s_mov_b32 s50, 0x20000
s_mov_b32 s51, 0x20000
v_lshrrev_b32 v44, 4, v0
v_and_b32 v45, 15, v0
s_lshl_b32 s28, s14, 4
v_add_u32 v45, s28, v45
v_mul_u32_u24 v{PW}, {PSTR}, v45
v_lshl_add_u32 v{PW}, v44, 4, v{PW}
s_mul_i32 s28, s15, {PHALF}
s_add_u32 s28, s28, {OA}
v_add_u32 v{PW}, s28, v{PW}
s_lshl_b32 s28, s11, 6
v_add_u32 v45, s28, v45
v_lshlrev_b32 v{VA1}, 15, v44
v_lshl_add_u32 v{VA1}, v45, 4, v{VA1}
v_lshlrev_b32 v{VA2}, 14, v44
v_lshl_add_u32 v{VA2}, v45, 3, v{VA2}
s_lshl_b32 s28, s15, 17
v_add_u32 v{VA1}, s28, v{VA1}
v_add_u32 v{VA2}, s28, v{VA2}
v_lshrrev_b32 v44, 2, v0
v_and_b32 v45, 3, v0
v_mul_u32_u24 v44, 160, v44
v_lshl_add_u32 v44, v45, 3, v44
s_mul_i32 s28, s15, 5120
v_add_u32 v{AW0}, s28, v44
v_add_u32 v{AW1}, 61440, v{AW0}
s_add_u32 s28, s10, {WS_OT}
s_add_u32 s16, s8, s28
s_addc_u32 s17, s9, 0
s_mov_b32 s18, 2621440
s_mov_b32 s19, 0x20000
s_mov_b32 s38, 0x3f803f80
s_and_b32 s29, s2, 7
s_lshl_b32 s29, s29, 12
s_lshr_b32 s30, s2, 3
s_lshl_b32 s30, s30, 7
s_add_u32 s29, s29, s30
""")
    for r in range(20):
        a(f"v_mov_b32 v{ACC + r}, 0")
    wait_flags(a, "opq_s1", "s29", 32)
    a("s_waitcnt vmcnt(0)")
    a("s_barrier")
    a.stamp(4)
    for i in range(8):
        a(f"s_mov_b32 s28, {i * 262144}")
        a(f"buffer_load_dwordx4 {vr(AR + 4 * i, 4)}, v{VA1}, s[16:19], s28 offen {LD}")
    for i in range(2):
        for rho in range(2):
            a(f"s_mov_b32 s28, {OSING + i * 262144 + rho * 65536}")
            a(f"buffer_load_dwordx2 {vr(AR + 32 + 4 * i + 2 * rho, 2)}, v{VA2}, s[16:19], s28 offen {LD}")

    def wread(j):
        i, t, rho = j // 10, (j % 10) // 2, j % 2
        reg = WS0 + 20 * (i % 4) + 4 * t + 2 * rho
        base, off = (AW0, i * 10240) if i < 6 else (AW1, (i - 6) * 10240)
        a(f"ds_read_b64_tr_b16 {vr(reg, 2)}, v{base} offset:{off + rho * 2560 + t * 32}")

    for j in range(40):
        if j >= 14 and j % 4 == 2:
            a("s_waitcnt lgkmcnt(10)")
        wread(j)
    for n in range(50):
        i, t = n // 5, n % 5
        issued = min(100, 40 + 2 * n)
        allowed = min(13, issued - (2 * n + 2))
        if t == 0:
            a(f"s_waitcnt vmcnt({[11, 10, 9, 8, 7, 6, 5, 4, 2, 0][i]}) lgkmcnt({allowed})")
        else:
            a(f"s_waitcnt lgkmcnt({allowed})")
        acc = vr(ACC + 4 * t, 4)
        a(f"v_mfma_f32_16x16x32_bf16 {acc}, {vr(WS0 + 20 * (i % 4) + 4 * t, 4)}, {vr(AR + 4 * i, 4)}, {acc}")
        if 40 + 2 * n < 100:
            wread(40 + 2 * n)
            wread(41 + 2 * n)
    a.stamp(5)
    for t in range(5):
        a(f"ds_write_b128 v{PW}, {vr(ACC + 4 * t, 4)} offset:{64 * t}")
    XF = 100
    for r in range(8):
        a(f"v_lshlrev_b32 v{XF + 2 * r}, 16, v{XR + r}")
        a(f"v_and_b32 v{XF + 2 * r + 1}, 0xffff0000, v{XR + r}")
    a("v_mov_b32 v92, 0")
    a("v_mov_b32 v93, 0")
    a("s_waitcnt lgkmcnt(0)")
    a("s_barrier")
    for p, pr in ((0, PR1), (1, PR2)):
        for g in range(2):
            for hf in range(2):
                a(f"ds_read_b128 {vr(44 + 16 * p + 8 * g + 4 * hf, 4)}, v{pr} offset:{g * PHALF + 16 * hf}")
    for p in range(2):
        b = 44 + 16 * p
        a(f"s_waitcnt lgkmcnt({6 - 4 * p})")
        for r in range(8):
            a(f"v_add_f32 v{XF + 8 * p + r}, v{XF + 8 * p + r}, v{b + r}")
        a(f"s_waitcnt lgkmcnt({4 - 4 * p})")
        for r in range(8):
            a(f"v_add_f32 v{XF + 8 * p + r}, v{XF + 8 * p + r}, v{b + 8 + r}")
        for r in range(4):
            a(f"v_cvt_pk_bf16_f32 v{84 + 4 * p + r}, v{XF + 8 * p + 2 * r}, v{XF + 8 * p + 2 * r + 1}")
        if p == 1:
            a("s_mov_b64 exec, s[46:47]")
        a(f"buffer_store_dwordx4 {vr(84 + 4 * p, 4)}, v{VXO + p}, s[40:43], 0 offen {WT}")
    for p in (1, 0):
        for r in range(4):
            a(f"v_dot2_f32_bf16 v92, v{84 + 4 * p + r}, s38, v92")
            a(f"v_dot2_f32_bf16 v93, v{84 + 4 * p + r}, v{84 + 4 * p + r}, v93")
        if p == 1:
            a("s_mov_b64 exec, -1")
    a(f"""
s_mov_b64 exec, -1
s_bitcmp1_b32 s54, 1
s_cbranch_scc1 opq_fin
v_add_f32_dpp v92, v92, v92 quad_perm:[1,0,3,2] row_mask:0xf bank_mask:0xf
v_add_f32_dpp v93, v93, v93 quad_perm:[1,0,3,2] row_mask:0xf bank_mask:0xf
v_add_f32_dpp v92, v92, v92 quad_perm:[2,3,0,1] row_mask:0xf bank_mask:0xf
v_add_f32_dpp v93, v93, v93 quad_perm:[2,3,0,1] row_mask:0xf bank_mask:0xf
v_add_f32_dpp v92, v92, v92 row_half_mirror row_mask:0xf bank_mask:0xf
v_add_f32_dpp v93, v93, v93 row_half_mirror row_mask:0xf bank_mask:0xf
s_mov_b32 exec_lo, 0x01010101
s_mov_b32 exec_hi, 0x01010101
buffer_store_dwordx2 v[92:93], v{VS}, s[48:51], 0 offen {WT}
s_mov_b64 exec, -1
""")
    a.stamp(6)
    a(f"""
s_lshr_b32 s30, s11, 1
s_lshl_b32 s30, s30, 11
s_and_b32 s31, s11, 1
s_lshl_b32 s31, s31, 3
s_add_u32 s31, s31, s12
s_lshl_b32 s31, s31, 2
s_add_u32 s30, s30, s31
s_add_u32 s30, s30, 32768
s_and_b32 s28, s2, 7
s_lshr_b32 s29, s2, 3
s_lshr_b32 s11, s28, 1
s_lshl_b32 s11, s11, 2
s_and_b32 s12, s29, 3
s_add_u32 s11, s11, s12
s_and_b32 s12, s28, 1
s_lshl_b32 s12, s12, 3
s_lshr_b32 s29, s29, 2
s_add_u32 s12, s12, s29
s_lshl_b32 s31, s11, 4
s_add_u32 s31, s31, s12
s_lshl_b32 s31, s31, 7
s_add_u32 s31, s31, 32768
s_mov_b32 s38, 1.0
s_cmp_lt_u32 s12, 5
s_cmov_b32 s38, {f32(QSCALE)}
s_cmp_ge_u32 s12, 15
s_cbranch_scc1 opq_idle
s_cmp_eq_u32 s15, 0
s_cbranch_scc1 opq_qcons
""")
    VH, VM, VF = 2, 3, 62
    a(f"""
s_lshl_b32 s29, s12, 8
s_add_u32 s20, s6, s29
s_addc_u32 s21, s7, 0
s_sub_u32 s22, 2457600, s29
s_mov_b32 s23, 0x20000
v_lshrrev_b32 v3, 4, v0
v_lshrrev_b32 v4, 2, v0
v_xor_b32 v4, v4, v3
v_and_b32 v4, 3, v4
v_and_b32 v5, 3, v0
s_lshl_b32 s29, s14, 2
v_add_u32 v3, s29, v3
v_mul_u32_u24 v3, 3840, v3
v_lshl_add_u32 v3, v4, 6, v3
v_lshl_add_u32 v3, v5, 4, v3
s_lshl_b32 s35, s14, 10
""")

    def q_b(c):
        for j in range(5):
            a(f"s_add_u32 m0, s35, {(c % 4) * CH + j * 4096}")
            a(f"s_mov_b32 s34, {(c * 80 + 16 * j) * 3840}")
            a("buffer_load_dwordx4 v3, s[20:23], s34 offen lds")

    def q_a(c):
        a(f"s_add_u32 m0, s36, {QA + (c % 4) * CH}")
        a(f"s_add_u32 s34, s36, {c * CH}")
        for j in range(4):
            a(f"buffer_load_dwordx4 v2, s[16:19], s34 offen offset:{1024 * j} {LD} lds")
        a(f"s_add_u32 m0, s36, {QA + (c % 4) * CH + 4096}")
        a(f"s_add_u32 s34, s36, {c * CH + 4096}")
        a(f"buffer_load_dwordx4 v2, s[16:19], s34 offen {LD} lds")

    q_b(0)
    a("s_waitcnt vmcnt(5)")
    a("s_barrier")
    q_b(1)
    q_b(2)
    q_b(3)
    a(f"""
s_mul_i32 s28, s11, {8 * CH}
s_add_u32 s28, s28, s58
s_add_u32 s16, s8, s28
s_addc_u32 s17, s9, 0
s_mov_b32 s18, {8 * CH}
s_mul_i32 s36, s14, 5120
v_lshrrev_b32 v4, 5, v0
v_and_b32 v5, 31, v0
v_lshlrev_b32 v6, 3, v5
v_lshl_add_u32 v6, v4, 11, v6
s_lshl_b32 s28, s11, 13
s_lshr_b32 s29, s14, 1
s_lshl_b32 s29, s29, 12
s_add_u32 s28, s28, s29
s_and_b32 s29, s14, 1
s_lshl_b32 s29, s29, 8
s_add_u32 s28, s28, s29
s_lshl_b32 s29, s14, 7
v_lshl_add_u32 v7, v5, 2, s29
s_barrier
""")
    for c in range(4):
        q_a(c)
    for p in range(4):
        a(f"buffer_load_dwordx2 {vr(8 + 2 * p, 2)}, v6, s[48:51], s28 offen offset:{512 * p} {LD}")
    waits = [19, 14, 19, 24, 20, 20, 10, 0]
    for n in range(8):
        a(f"s_waitcnt vmcnt({waits[n]})" + (" lgkmcnt(0)" if n == 6 else ""))
        a("s_barrier")
        if 1 <= n <= 4:
            q_a(n + 3)
            q_b(n + 3)
        if n == 4:
            a("""
v_add_f32 v8, v8, v10
v_add_f32 v9, v9, v11
v_add_f32 v12, v12, v14
v_add_f32 v13, v13, v15
v_add_f32 v8, v8, v12
v_add_f32 v9, v9, v13
v_mov_b32 v10, v8
v_mov_b32 v11, v9
v_permlane32_swap_b32 v10, v8
v_permlane32_swap_b32 v11, v9
v_add_f32 v8, v8, v10
v_add_f32 v9, v9, v11
""")
            Q.row_stats(a, 8, 9, 12, 13, 10)
        if n == 5:
            a("ds_write_b32 v7, v12")
            a("ds_write_b32 v7, v13 offset:512")
    a("s_endpgm")

    a.label("opq_idle")
    a("s_waitcnt vmcnt(0)")
    a("s_barrier")
    signal(a, "opq_s3", "s30", 15)
    a("s_branch opq_fin")

    QACC = 64
    QF = [128, 144]
    AA, AB = 8, 18
    EO = 24
    SC, XO, WO, NM = 56, 58, 52, 20
    Q.ACC, Q.XO, Q.WO = QACC, XO, WO
    a.label("opq_qcons")
    a("s_waitcnt vmcnt(0)")
    a("s_barrier")
    a.stamp(7)
    signal(a, "opq_s2", "s30", 15)
    a(f"""
s_lshr_b32 s14, s13, 1
s_and_b32 s15, s13, 1
v_lshrrev_b32 v{VH}, 5, v0
v_and_b32 v{VM}, 31, v0
s_lshl_b32 s40, s11, 2
s_lshl_b32 s28, s14, 1
s_add_u32 s40, s40, s28
s_add_u32 s40, s40, s15
s_xor_b32 s41, s40, 1
s_cmp_lt_u32 s12, 10
s_cselect_b64 s[44:45], -1, 0
v_and_b32 v4, 0x13, v0
v_and_b32 v5, 4, v0
v_lshl_add_u32 v4, v5, 1, v4
v_and_b32 v5, 8, v0
v_lshrrev_b32 v5, 1, v5
v_add_u32 v4, v4, v5
v_cndmask_b32 v{VF}, v{VM}, v4, s[44:45]
s_mov_b32 s20, s8
s_mov_b32 s21, s9
s_mov_b32 s22, 0x1000000
s_mov_b32 s23, 0x20000
v_lshlrev_b32 v5, 3, v{VF}
s_lshl_b32 s28, s12, 10
s_lshl_b32 s29, s15, 9
s_add_u32 s28, s28, s29
s_lshl_b32 s29, s14, 8
s_add_u32 s28, s28, s29
s_add_u32 s28, s28, s56
s_xor_b32 s29, s28, 256
buffer_load_dwordx2 {vr(WO, 2)}, v5, s[20:23], s28 offen
buffer_load_dwordx2 {vr(WO + 2, 2)}, v5, s[20:23], s29 offen
v_lshrrev_b32 v4, 3, v{VM}
v_mul_u32_u24 v5, 1280, v4
v_and_b32 v6, 7, v{VM}
v_lshrrev_b32 v7, 1, v{VM}
v_xor_b32 v7, v7, v{VH}
v_and_b32 v7, 7, v7
v_lshl_add_u32 v7, v7, 4, v5
v_lshl_add_u32 v7, v6, 7, v7
v_xor_b32 v4, v4, v{VH}
v_and_b32 v4, 1, v4
v_lshl_add_u32 v4, v4, 4, v5
v_lshl_add_u32 v4, v6, 5, v4
v_add_u32 v4, 1024, v4
s_mul_i32 s28, s14, 10240
s_add_u32 s28, s28, {QA}
s_mul_i32 s29, s15, 5120
s_add_u32 s29, s29, s28
v_add_u32 v{AA}, s29, v7
v_add_u32 v{AA + 4}, s29, v4
s_xor_b32 s29, s15, 1
s_mul_i32 s29, s29, 5120
s_add_u32 s29, s29, s28
v_add_u32 v{AA + 5}, s29, v7
v_add_u32 v{AA + 9}, s29, v4
""")
    for i in range(2):
        for ks in range(1, 4):
            a(f"v_xor_b32 v{AA + 5 * i + ks}, {ks << 5}, v{AA + 5 * i}")
    a(f"""
v_lshrrev_b32 v4, 2, v0
v_and_b32 v4, 3, v4
v_lshl_add_u32 v5, v{VH}, 3, v4
v_lshlrev_b32 v5, 8, v5
v_and_b32 v6, 16, v0
v_lshl_add_u32 v5, v6, 1, v5
v_and_b32 v6, 3, v0
v_lshlrev_b32 v6, 3, v6
v_and_b32 v7, 1, v0
v_lshlrev_b32 v7, 4, v7
v_and_b32 v48, 2, v0
v_lshl_add_u32 v7, v48, 2, v7
v_cndmask_b32 v6, v6, v7, s[44:45]
v_add_u32 v5, v5, v6
s_lshl_b32 s28, s15, 1
s_add_u32 s28, s28, s14
v_xor_b32 v4, s28, v4
v_lshl_add_u32 v{AB}, v4, 6, v5
v_xor_b32 v{AB + 1}, 64, v{AB}
s_lshl_b32 s28, s13, 7
v_lshl_add_u32 v50, v{VM}, 2, s28
v_xor_b32 v51, 128, v50
v_lshl_add_u32 v22, v{VH}, 4, s28
v_xor_b32 v23, 128, v22
s_mov_b32 s37, 0
s_mov_b32 s27, 0x20000
s_mov_b32 s50, -1
s_mov_b32 s51, 0
""")
    for r in range(64):
        a(f"v_mov_b32 v{QACC + r}, 0")
    a("""
s_cmp_ge_u32 s12, 10
s_cbranch_scc1 opq_v_setup
""")

    def qreads(Fb, ks):
        return [f"ds_read_b128 {vr(Fb, 4)}, v{AA + ks}",
                f"ds_read_b64_tr_b16 {vr(Fb + 8, 2)}, v{AB} offset:{ks * 4096}",
                f"ds_read_b64_tr_b16 {vr(Fb + 10, 2)}, v{AB} offset:{ks * 4096 + 1024}",
                f"ds_read_b64_tr_b16 {vr(Fb + 12, 2)}, v{AB + 1} offset:{ks * 4096}",
                f"ds_read_b64_tr_b16 {vr(Fb + 14, 2)}, v{AB + 1} offset:{ks * 4096 + 1024}",
                f"ds_read_b128 {vr(Fb + 4, 4)}, v{AA + 5 + ks}"]

    AVR = [32, QF[0]]

    def qloop(typ):
        wait_flags(a, f"opq_s2{typ}", "s31", 16)
        a("s_barrier")
        a.stamp(8)
        a("s_barrier")
        for r in qreads(QF[0], 0):
            a(r)
        a.label(f"opq_qloop_{typ}")
        for half in range(2):
            for ks in range(4):
                s = 5 * half + ks
                Q.gen_step(a, typ, QF[s % 2], False, qreads(QF[(s + 1) % 2], ks + 1))
            s = 5 * half + 4
            if half == 0:
                for r in range(12):
                    a(f"v_add_u32 v{AA + r}, {CH}, v{AA + r}")
                a("s_waitcnt lgkmcnt(0)")
            else:
                a(f"""
s_add_u32 s37, s37, 1
s_mov_b32 s39, {CH}
s_cmp_eq_u32 s37, 2
s_cmov_b32 s39, {(-3 * CH) & 0xffffffff}
""")
                for r in range(12):
                    a(f"v_add_u32 v{AA + r}, s39, v{AA + r}")
                a(f"""
s_cmp_eq_u32 s37, 4
s_waitcnt lgkmcnt(0)
s_cbranch_scc1 opq_qlast_{typ}
""")
            Q.gen_step(a, typ, QF[s % 2], False, qreads(QF[(s + 1) % 2], 0), waits=False, mid=lambda: a("s_barrier"))
        a(f"s_branch opq_qloop_{typ}")
        a.label(f"opq_qlast_{typ}")
        a.stamp(9)
        a(f"ds_read_b32 v{NM}, v50 offset:512")
        a(f"ds_read_b32 v{NM + 1}, v51 offset:512")
        if typ == "qk":
            a(f"ds_read_b32 v{SC}, v50")
            a(f"ds_read_b32 v{SC + 1}, v51")
        else:
            for i in range(2):
                for g in range(4):
                    a(f"ds_read_b128 {vr(AVR[i] + 4 * g, 4)}, v{22 + i} offset:{32 * g}")
        Q.gen_step(a, typ, QF[1], False, [], waits=False)
        a("s_waitcnt vmcnt(0) lgkmcnt(0)")
        Q.x_operand(a, NM, XO, 4)
        Q.x_operand(a, NM + 1, XO + 2, 5)
        Q.rank1(a, typ, False)

    masks = [f"s[{x}:{x + 1}]" for x in (46, 48, 34, 32)]
    a(f"""
s_mov_b32 s42, 81920
s_mov_b32 s43, 1280
s_mov_b32 s36, 1024
s_mov_b32 s28, {WS_QI}
s_mov_b32 s26, {QI_BYTES}
s_cmp_ge_u32 s12, 5
s_cmov_b32 s42, 163840
s_cmov_b32 s43, 2560
s_cmov_b32 s36, 2304
s_cmov_b32 s28, {WS_KV}
s_cmov_b32 s26, {KV_BYTES}
s_cselect_b32 s29, 5, 0
s_add_u32 s28, s28, s58
s_add_u32 s24, s8, s28
s_addc_u32 s25, s9, 0
s_sub_u32 s29, s12, s29
s_mul_i32 s40, s40, s43
s_mul_i32 s41, s41, s43
s_lshl_b32 s29, s29, 4
s_lshl_b32 s28, s15, 3
s_add_u32 s29, s29, s28
v_lshlrev_b32 v6, 4, v{VM}
v_lshlrev_b32 v7, 3, v{VM}
v_add_u32 v7, s36, v7
v_mov_b32 v47, 0x7fffff00
""")
    for j in range(2):
        a(f"s_xor_b32 s28, s14, {j}")
        a("s_lshl_b32 s28, s28, 2")
        a("s_add_u32 s28, s28, s29")
        for gp in range(2):
            e = EO + 2 * (2 * j + gp)
            mask = masks[2 * j + gp]
            a(f"""
s_add_u32 s30, s28, {2 * gp}
v_add_u32 v4, s30, v{VH}
v_mul_u32_u24 v5, 205, v4
v_lshrrev_b32 v5, 10, v5
v_mul_u32_u24 v48, 5, v5
v_sub_u32 v4, v4, v48
v_cmp_eq_u32 {mask}, 2, v4
v_cmp_lt_u32 s[44:45], 2, v4
v_lshlrev_b32 v5, 1, v5
v_mul_lo_u32 v5, v5, s42
v_add_u32 v49, v5, v7
v_cndmask_b32 v{e + 1}, v47, v49, {mask}
v_mov_b32 v48, 0
v_mov_b32 v49, s42
v_cndmask_b32 v48, v48, v49, s[44:45]
v_add_u32 v5, v5, v48
v_subrev_u32 v48, 3, v4
v_cndmask_b32 v4, v4, v48, s[44:45]
v_lshl_add_u32 v4, v4, 9, v6
v_add_u32 v4, v4, v5
v_cndmask_b32 v{e}, v4, v47, {mask}
""")
    qloop("qk")
    TT = [8, 144]
    n = 0
    a("s_add_u32 s28, s40, s42")
    a("s_add_u32 s29, s41, s42")
    for i in range(2):
        for j in range(2):
            for gp in range(2):
                t = TT[n % 2]
                n += 1
                e = EO + 2 * (2 * j + gp)
                for r in range(8):
                    a(f"v_mul_f32 v{t + r}, v{SC + i}, v{QACC + (2 * i + j) * 16 + 8 * gp + r}")
                for r in range(4):
                    a(f"v_cvt_pk_bf16_f32 v{t + 8 + r}, v{t + 2 * r}, v{t + 2 * r + 1}")
                a(f"buffer_store_dwordx4 {vr(t + 8, 4)}, v{e}, s[24:27], s{40 + i} offen {WT}")
                a(f"s_cmp_eq_u64 {masks[2 * j + gp]}, 0")
                a(f"s_cbranch_scc1 opq_ns{n}")
                a(f"buffer_store_dwordx2 {vr(t + 8, 2)}, v{e + 1}, s[24:27], s{40 + i} offen {WT}")
                a(f"buffer_store_dwordx2 {vr(t + 10, 2)}, v{e + 1}, s[24:27], s{28 + i} offen {WT}")
                a.label(f"opq_ns{n}")
    a.label("opq_fin")
    a.stamp(10)
    a.dump(0, "s13")
    a("s_endpgm")

    a.label("opq_v_setup")
    a(f"""
s_add_u32 s28, s58, {WS_KV}
s_add_u32 s24, s8, s28
s_addc_u32 s25, s9, 0
s_mov_b32 s26, {KV_BYTES}
s_mul_i32 s40, s40, 2560
s_mul_i32 s41, s41, 2560
s_sub_u32 s29, s12, 10
s_lshl_b32 s29, s29, 7
s_lshl_b32 s28, s15, 6
s_add_u32 s29, s29, s28
s_mov_b32 s42, 163840
v_mul_u32_u24 v6, 320, v{VH}
v_add_u32 v6, 1024, v6
""")
    for j in range(2):
        a(f"""
s_xor_b32 s28, s14, {j}
s_lshl_b32 s28, s28, 5
s_add_u32 s28, s28, s29
v_add_u32 v4, s28, v{VM}
v_mul_u32_u24 v5, 3277, v4
v_lshrrev_b32 v5, 16, v5
v_mul_u32_u24 v48, 20, v5
v_sub_u32 v4, v4, v48
v_lshl_add_u32 v4, v4, 4, v6
v_mul_lo_u32 v5, v5, s42
v_add_u32 v{EO + j}, v5, v4
""")
    qloop("v")
    n = 0
    for i in range(2):
        for j in range(2):
            for gp in range(2):
                t = TT[n % 2]
                n += 1
                for r in range(8):
                    a(f"v_mul_f32 v{t + r}, v{AVR[i] + 8 * gp + r}, v{QACC + (2 * i + j) * 16 + 8 * gp + r}")
                for r in range(4):
                    a(f"v_cvt_pk_bf16_f32 v{t + 8 + r}, v{t + 2 * r}, v{t + 2 * r + 1}")
                a(f"buffer_store_dwordx4 {vr(t + 8, 4)}, v{EO + j}, s[24:27], s{40 + i} offen offset:{640 * gp} {WT}")
    a("s_branch opq_fin")
```

```python
import struct
from asmlib import Asm

WS_X = 0x0
WS_OT = 0x280000
WS_QI = 0x500000
WS_KV = 0x780000
WS_ST = 0xC80000
WS_CS = [0xCA0000, 0xCA4000]
WS_WOT = [0xCB0000, 0xD80000]
OPT = {}
LSTRIDE = 0x1000000


def lofs(layer):
    return layer * LSTRIDE if OPT.get('fresh', 1) else 0

QI_BYTES = 32 * 81920
KV_BYTES = 32 * 163840
QSCALE = (20 ** -0.5) * 1.4426950408889634


def f32(x):
    return "0x%08x" % struct.unpack("<I", struct.pack("<f", x))[0]


def vr(base, n):
    return f"v[{base}:{base + n - 1}]"


QKV_VGPRS = 192
ACC = 64
F = [128, 144]
AA = 8
AB = 16
ST = 18
EO = 24
VH, VM, VF = 2, 3, 62
SC = 56
XO = 58
WO = 160


def gen_qkv_stub(a, layer):
    name = f"qkv{layer}_kernel"
    a.raw(f".globl {name}")
    a.raw(".p2align 8")
    a.raw(f".type {name},@function")
    a.label(name)
    a(f"s_load_dwordx2 s[4:5], s[0:1], {0 if layer == 0 else 64}")
    a(f"s_load_dwordx2 s[6:7], s[0:1], {8 if layer % 2 == 0 else 32}")
    a("s_load_dwordx2 s[8:9], s[0:1], 64")
    a(f"s_mov_b32 s10, {WS_CS[layer % 2]}")
    a(f"s_mov_b32 s45, {lofs(layer)}")
    if layer != 0:
        a("s_branch qkvf_body")


def split3(a, src, d0, d1, t0, t1):
    a(f"""
v_cvt_pk_bf16_f32 v{t0}, v{src}, v{src}
v_and_b32 v{t0}, 0xffff0000, v{t0}
v_sub_f32 v{t1}, v{src}, v{t0}
v_cvt_pk_bf16_f32 v{d0}, v{t0}, v{t1}
v_and_b32 v{t0}, 0xffff0000, v{d0}
v_sub_f32 v{t1}, v{t1}, v{t0}
v_mov_b32 v{t0}, 0
v_cvt_pk_bf16_f32 v{d1}, v{t1}, v{t0}
""")


def row_stats(a, vs, vq, dst_scale, dst_negmean, t):
    a(f"""
v_mul_f32 v{vs}, {f32(1.0 / 640)}, v{vs}
v_mul_f32 v{vq}, {f32(1.0 / 640)}, v{vq}
v_fma_f32 v{vq}, -v{vs}, v{vs}, v{vq}
v_max_f32 v{vq}, 0, v{vq}
v_cvt_pk_bf16_f32 v{t}, v{vs}, v{vq}
v_and_b32 v{vq}, 0xffff0000, v{t}
v_lshlrev_b32 v{vs}, 16, v{t}
v_add_f32 v{vq}, {f32(1e-5)}, v{vq}
v_cvt_pk_bf16_f32 v{vq}, v{vq}, v{vq}
v_and_b32 v{vq}, 0xffff0000, v{vq}
v_sqrt_f32 v{vq}, v{vq}
v_cvt_pk_bf16_f32 v{vq}, v{vq}, v{vq}
v_and_b32 v{vq}, 0xffff0000, v{vq}
v_rcp_f32 v{vq}, v{vq}
v_xor_b32 v{dst_negmean}, 0x80000000, v{vs}
v_mul_f32 v{dst_scale}, s38, v{vq}
""")


def x_operand(a, negmean, dst, t):
    a(f"""
v_mov_b32 v{t}, 0
v_cndmask_b32 v{t}, v{t}, v{negmean}, s[50:51]
v_lshrrev_b32 v{dst + 1}, 16, v{t}
v_or_b32 v{dst}, v{dst + 1}, v{t}
""")


def rank1(a, typ, first):
    for i in range(2):
        for j in range(2):
            acc = vr(ACC + (2 * i + j) * 16, 16)
            c = "0" if first else acc
            xa, wb = vr(XO + 2 * i, 2), vr(WO + 2 * j, 2)
            if typ == "qk":
                a(f"v_mfma_f32_32x32x8_bf16 {acc}, {wb}, {xa}, {c}")
            else:
                a(f"v_mfma_f32_32x32x8_bf16 {acc}, {xa}, {wb}, {c}")


def gen_qkv_body(a, slow):
    P = "qkvs" if slow else "qkvf"
    WT = OPT.get("wt", "sc0 sc1")
    if not slow:
        a.raw(".p2align 8")
    a.label(f"{P}_body")
    a.stamp(0, real=True)
    a.stamp(1)
    a(f"""
s_cmp_ge_u32 s2, 256
s_cbranch_scc1 {P}_end
s_and_b32 s28, s2, 7
s_lshr_b32 s29, s2, 3
s_lshr_b32 s11, s28, 1
s_lshl_b32 s11, s11, 2
s_and_b32 s30, s29, 3
s_add_u32 s11, s11, s30
s_and_b32 s12, s28, 1
s_lshl_b32 s12, s12, 3
s_lshr_b32 s30, s29, 2
s_add_u32 s12, s12, s30
s_cmp_ge_u32 s12, 15
s_cbranch_scc1 {P + '_aux' if slow else P + '_end'}
v_lshrrev_b32 v1, 6, v0
v_and_b32 v0, 63, v0
v_readfirstlane_b32 s13, v1
s_mul_i32 s28, s11, 163840
s_add_u32 s28, s28, s45
s_lshl_b32 s29, s12, 8
s_mov_b32 s18, 163840
s_mov_b32 s19, 0x20000
s_sub_u32 s22, 2457600, s29
s_mov_b32 s23, 0x20000
s_cmp_ge_u32 s13, 4
s_cbranch_scc0 {P}_cons
""")
    a("""
s_sub_u32 s13, s13, 4
v_lshrrev_b32 v1, 3, v0
s_lshl_b32 s30, s13, 3
v_add_u32 v1, s30, v1
v_lshrrev_b32 v2, 1, v1
v_xor_b32 v2, v2, v0
v_and_b32 v2, 7, v2
v_mul_u32_u24 v1, 1280, v1
v_lshl_add_u32 v1, v2, 4, v1
v_lshrrev_b32 v3, 4, v0
v_lshrrev_b32 v4, 2, v0
v_xor_b32 v4, v4, v3
v_and_b32 v4, 3, v4
v_and_b32 v5, 3, v0
s_lshl_b32 s30, s13, 2
v_add_u32 v3, s30, v3
v_mul_u32_u24 v2, 3840, v3
v_lshl_add_u32 v2, v4, 6, v2
v_lshl_add_u32 v2, v5, 4, v2
s_lshl_b32 s30, s13, 10
s_mov_b32 s31, 0
s_mov_b32 s32, 0
s_mov_b32 s33, 0
s_waitcnt lgkmcnt(0)
s_add_u32 s16, s4, s28
s_addc_u32 s17, s5, 0
s_add_u32 s20, s6, s29
s_addc_u32 s21, s7, 0
""")
    if slow:
        a(f"""
s_load_dwordx2 s[56:57], s[0:1], 16
s_load_dwordx2 s[60:61], s[0:1], 40
s_mul_i32 s46, s11, 15
s_add_u32 s46, s46, s12
s_lshl_b32 s46, s46, 8
s_lshl_b32 s47, s13, 6
s_add_u32 s46, s46, s47
v_add_u32 v6, s46, v0
v_lshlrev_b32 v7, 4, v6
s_mov_b32 s47, 52429
v_mul_lo_u32 v3, v6, s47
v_lshrrev_b32 v3, 22, v3
v_mul_u32_u24 v4, 80, v3
v_sub_u32 v4, v6, v4
v_mul_u32_u24 v5, 6554, v4
v_lshrrev_b32 v5, 16, v5
v_mul_u32_u24 v16, 10, v5
v_sub_u32 v4, v4, v16
v_mul_u32_u24 v16, 3277, v3
v_lshrrev_b32 v16, 16, v16
v_mul_u32_u24 v17, 20, v16
v_sub_u32 v17, v3, v17
v_lshrrev_b32 v18, 3, v17
v_lshl_add_u32 v18, v16, 1, v18
v_lshrrev_b32 v19, 2, v18
v_lshlrev_b32 v19, 5, v19
v_and_b32 v18, 3, v18
v_lshl_add_u32 v19, v18, 2, v19
v_and_b32 v18, 4, v17
v_lshl_add_u32 v19, v18, 2, v19
v_lshlrev_b32 v18, 2, v16
v_add_u32 v18, 512, v18
v_cmp_le_u32 s[48:49], 16, v17
v_and_b32 v17, 3, v17
v_cndmask_b32 v3, v19, v18, s[48:49]
v_add_u32 v3, v3, v17
v_mul_u32_u24 v3, 160, v3
v_lshl_add_u32 v3, v4, 4, v3
s_mov_b32 s47, 102400
v_mul_lo_u32 v5, v5, s47
v_add_u32 v3, v3, v5
s_mov_b32 s47, 51200
v_cmp_gt_u32 s[48:49], s47, v6
v_mov_b32 v4, 0x7fffff00
v_cndmask_b32 v3, v4, v3, s[48:49]
s_mov_b32 s58, 819200
s_mov_b32 s59, 0x20000
s_mov_b32 s62, 819200
s_mov_b32 s63, 0x20000
s_add_u32 s24, s8, {WS_WOT[0]}
s_addc_u32 s25, s9, 0
s_mov_b32 s26, {WS_WOT[1] - WS_WOT[0] + 819200}
s_mov_b32 s27, 0x20000
s_mov_b32 s47, {WS_WOT[1] - WS_WOT[0]}
s_load_dwordx2 s[40:41], s[0:1], 32
v_mul_u32_u24 v6, 3840, v0
s_lshl_b32 s43, s12, 8
s_lshl_b32 s42, s11, 4
s_add_u32 s46, s42, s43
s_mov_b32 s42, 2457600
s_mov_b32 s43, 0x20000
s_waitcnt lgkmcnt(0)
""")
    a.label(f"{P}_ld_loop")
    a(f"""
s_cmp_lt_u32 s33, 5
s_cbranch_scc0 {P}_ld_b
s_cmp_eq_u32 s33, 3
s_cbranch_scc0 {P}_ld_issue
""")
    a.stamp(2)
    a("s_waitcnt vmcnt(16)")
    a.stamp(3)
    a("s_barrier")
    a(f"s_branch {P}_ld_issue")
    a.label(f"{P}_ld_b")
    a("""
s_waitcnt vmcnt(24)
s_barrier
""")
    a.label(f"{P}_ld_issue")
    for j in range(4):
        a(f"s_add_u32 m0, s30, {j * 4096}")
        a(f"s_add_u32 s34, s31, {j * 40960}")
        a("buffer_load_dwordx4 v1, s[16:19], s34 offen lds")
        a(f"s_add_u32 m0, s30, {16384 + j * 4096}")
        a(f"s_add_u32 s35, s32, {j * 16 * 3840}")
        a("buffer_load_dwordx4 v2, s[20:23], s35 offen lds")
    a(f"""
s_add_u32 s30, s30, 32768
s_add_u32 s31, s31, 128
s_add_u32 s32, s32, {64 * 3840}
s_add_u32 s33, s33, 1
s_cmp_eq_u32 s33, 5
s_cselect_b32 s34, 163840, 0
s_sub_u32 s30, s30, s34
s_cmp_lt_u32 s33, 10
s_cbranch_scc1 {P}_ld_loop
""")
    a.stamp(4)
    a("buffer_load_dwordx4 v[8:11], v7, s[56:59], 0 offen")
    a("buffer_load_dwordx4 v[12:15], v7, s[60:63], 0 offen")
    a(f"s_cmp_lg_u32 s13, 0")
    a(f"s_cbranch_scc1 {P}_ld_tail")
    for n in range(10):
        a(f"s_add_u32 s34, s46, {n * 64 * 3840}")
        a(f"buffer_load_dwordx4 {vr(32 + 4 * n, 4)}, v6, s[40:43], s34 offen")
    a("""
s_waitcnt vmcnt(36)
s_barrier
s_waitcnt vmcnt(28)
s_barrier
s_waitcnt vmcnt(20)
s_barrier
s_waitcnt vmcnt(12)
s_barrier
s_waitcnt vmcnt(10)
buffer_store_dwordx4 v[8:11], v3, s[24:27], 0 offen
buffer_store_dwordx4 v[12:15], v3, s[24:27], s47 offen
s_barrier
s_waitcnt vmcnt(2)
""")
    for r in range(4):
        a(f"v_lshlrev_b32 v{20 + 2 * r}, 16, v{32 + r}")
        a(f"v_and_b32 v{21 + 2 * r}, 0xffff0000, v{32 + r}")
    for n in range(1, 10):
        for r in range(4):
            a(f"v_lshlrev_b32 v4, 16, v{32 + 4 * n + r}")
            a(f"v_and_b32 v5, 0xffff0000, v{32 + 4 * n + r}")
            a(f"v_add_f32 v{20 + 2 * r}, v{20 + 2 * r}, v4")
            a(f"v_add_f32 v{21 + 2 * r}, v{21 + 2 * r}, v5")
    for dpp in ("quad_perm:[1,0,3,2]", "quad_perm:[2,3,0,1]", "row_half_mirror", "row_mirror"):
        for r in range(8):
            a(f"v_add_f32_dpp v{20 + r}, v{20 + r}, v{20 + r} {dpp} row_mask:0xf bank_mask:0xf")
    for r in range(8):
        a(f"v_mov_b32 v{32 + r}, v{20 + r}")
    for r in range(8):
        a(f"v_permlane16_swap_b32 v{32 + r}, v{20 + r}")
    for r in range(8):
        a(f"v_add_f32 v{20 + r}, v{20 + r}, v{32 + r}")
    for r in range(8):
        a(f"v_mov_b32 v{32 + r}, v{20 + r}")
    for r in range(8):
        a(f"v_permlane32_swap_b32 v{32 + r}, v{20 + r}")
    for r in range(8):
        a(f"v_add_f32 v{20 + r}, v{20 + r}, v{32 + r}")
    for r in range(1, 8):
        a(f"v_cmp_eq_u32 s[48:49], {r}, v0")
        a(f"v_cndmask_b32 v20, v20, v{20 + r}, s[48:49]")
    split3(a, 20, 8, 9, 10, 11)
    a(f"""
s_add_u32 s52, s8, {WS_CS[1]}
s_addc_u32 s53, s9, 0
s_mov_b32 s54, 15360
s_mov_b32 s55, 0x20000
s_lshl_b32 s29, s46, 2
v_lshlrev_b32 v4, 3, v0
s_mov_b64 exec, 0xff
buffer_store_dwordx2 v[8:9], v4, s[52:55], s29 offen
s_endpgm
""")
    a.label(f"{P}_ld_tail")
    a("""
s_waitcnt vmcnt(26)
s_barrier
s_waitcnt vmcnt(18)
s_barrier
s_waitcnt vmcnt(10)
s_barrier
s_waitcnt vmcnt(2)
""")
    a.stamp(5)
    a("s_barrier")
    a.stamp(6)
    a("""
s_waitcnt vmcnt(0)
buffer_store_dwordx4 v[8:11], v3, s[24:27], 0 offen
buffer_store_dwordx4 v[12:15], v3, s[24:27], s47 offen
s_barrier
""")
    if a.prof:
        a("s_add_u32 s13, s13, 4")
    a.dump(0, "s13")
    a.label(f"{P}_end")
    a("s_endpgm")

    a.label(f"{P}_cons")
    a(f"""
s_lshr_b32 s14, s13, 1
s_and_b32 s15, s13, 1
v_lshrrev_b32 v{VH}, 5, v0
v_and_b32 v{VM}, 31, v0
s_lshl_b32 s40, s11, 2
s_lshl_b32 s28, s14, 1
s_add_u32 s40, s40, s28
s_add_u32 s40, s40, s15
s_xor_b32 s41, s40, 1
s_mov_b32 s50, -1
s_mov_b32 s51, 0
s_mov_b32 s38, 1.0
s_cmp_lt_u32 s12, 5
s_cmov_b32 s38, {f32(QSCALE)}
s_mov_b32 s55, 0x20000
s_mov_b32 s54, 0x4000000
s_cmp_lt_u32 s12, 10
s_cselect_b64 s[62:63], -1, 0
v_and_b32 v4, 0x13, v0
v_and_b32 v5, 4, v0
v_lshl_add_u32 v4, v5, 1, v4
v_and_b32 v5, 8, v0
v_lshrrev_b32 v5, 1, v5
v_add_u32 v4, v4, v5
v_cndmask_b32 v{VF}, v{VM}, v4, s[62:63]
s_waitcnt lgkmcnt(0)
s_add_u32 s52, s8, {WS_ST}
s_addc_u32 s53, s9, 0
""")
    if OPT.get("touch", 2) == 2:
        a(f"""
s_mov_b32 s16, s4
s_mov_b32 s17, s5
s_mov_b32 s18, 2621440
s_mov_b32 s20, s6
s_mov_b32 s21, s7
s_mov_b32 s22, 2457600
s_mul_i32 s28, s11, 15
s_add_u32 s28, s28, s12
s_lshl_b32 s28, s28, 2
s_add_u32 s28, s28, s13
s_mul_i32 s29, s28, 2816
s_mul_i32 s28, s28, 2560
v_lshlrev_b32 v4, 7, v0
s_mov_b64 exec, 0x3fffff
buffer_load_dword v50, v4, s[16:19], s29 offen
s_mov_b64 exec, 0xfffff
buffer_load_dword v52, v4, s[20:23], s28 offen
s_mov_b64 exec, -1
""")
    if OPT.get("touch", 2) == 1:
        a(f"""
s_mul_i32 s28, s11, 163840
s_add_u32 s16, s4, s28
s_addc_u32 s17, s5, 0
s_lshl_b32 s29, s12, 8
s_add_u32 s20, s6, s29
s_addc_u32 s21, s7, 0
s_and_b32 s28, s12, 7
s_mul_i32 s28, s28, 24576
s_mul_i32 s29, s13, 6144
s_add_u32 s28, s28, s29
v_lshlrev_b32 v4, 7, v0
s_mov_b32 exec_hi, 0xffff
buffer_load_dword v50, v4, s[16:19], s28 offen
s_mov_b32 exec_hi, -1
v_lshrrev_b32 v4, 1, v0
v_mul_u32_u24 v4, 61440, v4
v_and_b32 v5, 1, v0
v_lshl_add_u32 v4, v5, 7, v4
s_and_b32 s28, s11, 3
s_lshl_b32 s28, s28, 2
s_add_u32 s28, s28, s13
s_mul_i32 s28, s28, 3840
buffer_load_dword v52, v4, s[20:23], s28 offen
s_add_u32 s28, s28, {32 * 61440}
buffer_load_dword v53, v4, s[20:23], s28 offen
""")
    if not slow:
        a(f"""
v_lshlrev_b32 v4, 6, v{VM}
v_lshl_add_u32 v4, v{VH}, 5, v4
s_lshl_b32 s28, s40, 11
s_lshl_b32 s29, s41, 11
s_add_u32 s28, s28, s45
s_add_u32 s29, s29, s45
buffer_load_dwordx4 v[32:35], v4, s[52:55], s28 offen
buffer_load_dwordx4 v[36:39], v4, s[52:55], s28 offen offset:16
buffer_load_dwordx4 v[40:43], v4, s[52:55], s29 offen
buffer_load_dwordx4 v[44:47], v4, s[52:55], s29 offen offset:16
v_lshlrev_b32 v5, 3, v{VF}
s_lshl_b32 s28, s12, 10
s_lshl_b32 s29, s15, 9
s_add_u32 s28, s28, s29
s_lshl_b32 s29, s14, 8
s_add_u32 s28, s28, s29
s_sub_u32 s29, s10, {WS_ST}
s_add_u32 s28, s28, s29
s_xor_b32 s29, s28, 256
buffer_load_dwordx2 {vr(WO, 2)}, v5, s[52:55], s28 offen
buffer_load_dwordx2 {vr(WO + 2, 2)}, v5, s[52:55], s29 offen
""")
    a(f"""
v_lshrrev_b32 v4, 1, v{VM}
v_xor_b32 v4, v4, v{VH}
v_and_b32 v4, 7, v4
v_lshlrev_b32 v4, 4, v4
v_lshl_add_u32 v4, v{VM}, 7, v4
s_lshl_b32 s28, s14, 13
s_lshl_b32 s29, s15, 12
s_add_u32 s30, s28, s29
s_xor_b32 s31, s30, 4096
v_add_u32 v{AA}, s30, v4
v_add_u32 v{AA + 4}, s31, v4
""")
    for i in range(2):
        for ks in range(1, 4):
            a(f"v_xor_b32 v{AA + 4 * i + ks}, {ks << 5}, v{AA + 4 * i}")
    a(f"""
v_lshrrev_b32 v4, 2, v0
v_and_b32 v4, 3, v4
v_lshl_add_u32 v5, v{VH}, 3, v4
v_lshlrev_b32 v5, 8, v5
v_and_b32 v6, 16, v0
v_lshl_add_u32 v5, v6, 1, v5
v_and_b32 v6, 3, v0
v_lshlrev_b32 v6, 3, v6
v_and_b32 v7, 1, v0
v_lshlrev_b32 v7, 4, v7
v_and_b32 v48, 2, v0
v_lshl_add_u32 v7, v48, 2, v7
v_cndmask_b32 v6, v6, v7, s[62:63]
v_add_u32 v5, v5, v6
s_lshl_b32 s28, s15, 1
s_add_u32 s28, s28, s14
v_xor_b32 v4, s28, v4
v_lshl_add_u32 v5, v4, 6, v5
v_add_u32 v{AB}, 16384, v5
v_xor_b32 v{AB + 1}, 64, v{AB}
s_mov_b32 s36, 0x3f803f80
s_mov_b32 s27, 0x20000
s_mov_b32 s37, 0
""")
    if slow:
        for r in range(6):
            a(f"v_mov_b32 v{ST + r}, 0")
        for r in range(64):
            a(f"v_mov_b32 v{ACC + r}, 0")
    a(f"""
s_cmp_ge_u32 s12, 10
s_cbranch_scc1 {P}_v_setup
""")

    def fast_stats():
        a("s_waitcnt vmcnt(2)")
        for i in range(2):
            b = 32 + 8 * i
            a(f"""
v_add_f32 v{b}, v{b}, v{b + 2}
v_add_f32 v{b + 1}, v{b + 1}, v{b + 3}
v_add_f32 v{b + 4}, v{b + 4}, v{b + 6}
v_add_f32 v{b + 5}, v{b + 5}, v{b + 7}
v_add_f32 v{b}, v{b}, v{b + 4}
v_add_f32 v{b + 1}, v{b + 1}, v{b + 5}
v_mov_b32 v{b + 2}, v{b}
v_mov_b32 v{b + 3}, v{b + 1}
v_permlane32_swap_b32 v{b + 2}, v{b}
v_permlane32_swap_b32 v{b + 3}, v{b + 1}
v_add_f32 v{b}, v{b}, v{b + 2}
v_add_f32 v{b + 1}, v{b + 1}, v{b + 3}
""")
            row_stats(a, b, b + 1, SC + i, b + 2, b + 3)
            x_operand(a, b + 2, XO + 2 * i, b + 3)
        a("s_waitcnt vmcnt(0)")

    def slow_stats(typ):
        a(f"""
v_add_f32 v4, v{ST}, v{ST + 1}
v_add_f32 v5, v{ST + 2}, v{ST + 3}
v_add_f32 v6, v{ST + 4}, v{ST + 5}
v_mov_b32 v7, v4
v_mov_b32 v8, v5
v_mov_b32 v9, v6
v_permlane32_swap_b32 v7, v4
v_permlane32_swap_b32 v8, v5
v_permlane32_swap_b32 v9, v6
v_add_f32 v4, v4, v7
v_add_f32 v5, v5, v8
v_add_f32 v6, v6, v9
""")
        row_stats(a, 4, 5, SC, 8, 7)
        split3(a, 6, WO, WO + 1, 9, 10)
        a(f"""
s_lshl_b32 s28, s14, 8
s_lshl_b32 s29, s15, 7
s_add_u32 s28, s28, s29
v_lshl_add_u32 v7, v{VM}, 2, s28
ds_write_b32 v7, v{SC} offset:4096
ds_write_b32 v7, v8 offset:4608
s_lshl_b32 s28, s15, 9
s_lshl_b32 s29, s14, 8
s_add_u32 s28, s28, s29
v_lshl_add_u32 v9, v{VF}, 3, s28
ds_write_b64 v9, {vr(WO, 2)} offset:5120
s_lshl_b32 s29, s12, 10
s_add_u32 s29, s29, {WS_CS[0] - WS_ST}
s_cmp_lg_u32 s11, 0
s_cbranch_scc1 {P}_nocs_{typ}
buffer_store_dwordx2 {vr(WO, 2)}, v9, s[52:55], s29 offen
""")
        a.label(f"{P}_nocs_{typ}")
        a(f"""
s_waitcnt lgkmcnt(0)
s_barrier
v_xor_b32 v7, 128, v7
v_xor_b32 v9, 256, v9
ds_read_b32 v{SC + 1}, v7 offset:4096
ds_read_b32 v10, v7 offset:4608
ds_read_b64 {vr(WO + 2, 2)}, v9 offset:5120
""")
        x_operand(a, 8, XO, 11)
        a("s_waitcnt lgkmcnt(0)")
        x_operand(a, 10, XO + 2, 11)
        rank1(a, typ, False)

    a(f"""
s_mov_b32 s42, 81920
s_mov_b32 s43, 1280
s_mov_b32 s44, 1024
s_mov_b32 s28, {WS_QI}
s_mov_b32 s26, {QI_BYTES}
s_cmp_ge_u32 s12, 5
s_cmov_b32 s42, 163840
s_cmov_b32 s43, 2560
s_cmov_b32 s44, 2304
s_cmov_b32 s28, {WS_KV}
s_cmov_b32 s26, {KV_BYTES}
s_cselect_b32 s29, 5, 0
s_add_u32 s28, s28, s45
s_add_u32 s24, s8, s28
s_addc_u32 s25, s9, 0
s_sub_u32 s29, s12, s29
s_mul_i32 s40, s40, s43
s_mul_i32 s41, s41, s43
s_lshl_b32 s29, s29, 4
s_lshl_b32 s28, s15, 3
s_add_u32 s29, s29, s28
v_lshlrev_b32 v6, 4, v{VM}
v_lshlrev_b32 v7, 3, v{VM}
v_add_u32 v7, s44, v7
v_mov_b32 v51, 0x7fffff00
""")
    for j in range(2):
        a(f"s_xor_b32 s28, s14, {j}")
        a("s_lshl_b32 s28, s28, 2")
        a("s_add_u32 s28, s28, s29")
        for gp in range(2):
            e = EO + 2 * (2 * j + gp)
            sm = 56 + 2 * ((2 * j + gp) % 2) if False else None
            mask = [f"s[{x}:{x + 1}]" for x in (46, 48, 56, 58)][2 * j + gp]
            a(f"""
s_add_u32 s30, s28, {2 * gp}
v_add_u32 v4, s30, v{VH}
v_mul_u32_u24 v5, 205, v4
v_lshrrev_b32 v5, 10, v5
v_mul_u32_u24 v48, 5, v5
v_sub_u32 v4, v4, v48
v_cmp_eq_u32 {mask}, 2, v4
v_cmp_lt_u32 s[60:61], 2, v4
v_lshlrev_b32 v5, 1, v5
v_mul_lo_u32 v5, v5, s42
v_add_u32 v49, v5, v7
v_cndmask_b32 v{e + 1}, v51, v49, {mask}
v_mov_b32 v48, 0
v_mov_b32 v49, s42
v_cndmask_b32 v48, v48, v49, s[60:61]
v_add_u32 v5, v5, v48
v_subrev_u32 v48, 3, v4
v_cndmask_b32 v4, v4, v48, s[60:61]
v_lshl_add_u32 v4, v4, 9, v6
v_add_u32 v4, v4, v5
v_cndmask_b32 v{e}, v4, v51, {mask}
""")
    if not slow:
        fast_stats()
        rank1(a, "qk", True)
    gen_mainloop(a, P, "qk", slow, None)
    if slow:
        slow_stats("qk")
    a.stamp(5)
    T = 164
    n = 0
    a("s_add_u32 s28, s40, s42")
    a("s_add_u32 s29, s41, s42")
    for i in range(2):
        for j in range(2):
            for gp in range(2):
                t = T + 12 * (n % 2)
                n += 1
                e = EO + 2 * (2 * j + gp)
                mask = [f"s[{x}:{x + 1}]" for x in (46, 48, 56, 58)][2 * j + gp]
                for r in range(8):
                    a(f"v_mul_f32 v{t + r}, v{SC + i}, v{ACC + (2 * i + j) * 16 + 8 * gp + r}")
                for r in range(4):
                    a(f"v_cvt_pk_bf16_f32 v{t + 8 + r}, v{t + 2 * r}, v{t + 2 * r + 1}")
                a(f"buffer_store_dwordx4 {vr(t + 8, 4)}, v{e}, s[24:27], s{40 + i} offen {WT}")
                a(f"s_cmp_eq_u64 {mask}, 0")
                a(f"s_cbranch_scc1 {P}_ns{n}")
                a(f"buffer_store_dwordx2 {vr(t + 8, 2)}, v{e + 1}, s[24:27], s{40 + i} offen {WT}")
                a(f"buffer_store_dwordx2 {vr(t + 10, 2)}, v{e + 1}, s[24:27], s{28 + i} offen {WT}")
                a.label(f"{P}_ns{n}")
    a.stamp(6)
    if a.prof == 1:
        a("s_waitcnt vmcnt(0)")
    a.stamp(7)
    a.dump(0, "s13")
    a("s_endpgm")

    a.label(f"{P}_v_setup")
    a(f"""
s_add_u32 s28, s45, {WS_KV}
s_add_u32 s24, s8, s28
s_addc_u32 s25, s9, 0
s_mov_b32 s26, {KV_BYTES}
s_mul_i32 s40, s40, 2560
s_mul_i32 s41, s41, 2560
s_sub_u32 s29, s12, 10
s_lshl_b32 s29, s29, 7
s_lshl_b32 s28, s15, 6
s_add_u32 s29, s29, s28
s_mov_b32 s42, 163840
v_mul_u32_u24 v6, 320, v{VH}
v_add_u32 v6, 1024, v6
s_lshl_b32 s28, s13, 8
v_lshl_add_u32 v{EO + 2}, v{VM}, 2, s28
v_lshl_add_u32 v{EO + 3}, v{VH}, 4, s28
""")
    for j in range(2):
        a(f"""
s_xor_b32 s28, s14, {j}
s_lshl_b32 s28, s28, 5
s_add_u32 s28, s28, s29
v_add_u32 v4, s28, v{VM}
v_mul_u32_u24 v5, 3277, v4
v_lshrrev_b32 v5, 16, v5
v_mul_u32_u24 v48, 20, v5
v_sub_u32 v4, v4, v48
v_lshl_add_u32 v4, v4, 4, v6
v_mul_lo_u32 v5, v5, s42
v_add_u32 v{EO + j}, v5, v4
""")
    AV = 160

    def scale_exchange():
        a(f"ds_write_b32 v{EO + 2}, v{SC}")
        a(f"ds_write_b32 v{EO + 2}, v{SC + 1} offset:128")
        a("s_waitcnt lgkmcnt(0)")
        for i in range(2):
            for g in range(4):
                a(f"ds_read_b128 {vr(AV + 16 * i + 4 * g, 4)}, v{EO + 3} offset:{128 * i + 32 * g}")

    if not slow:
        fast_stats()
        rank1(a, "v", True)
    gen_mainloop(a, P, "v", slow, None if slow else scale_exchange)
    if slow:
        slow_stats("v")
        scale_exchange()
    a.stamp(5)
    a("s_waitcnt lgkmcnt(0)")
    n = 0
    for i in range(2):
        for j in range(2):
            for gp in range(2):
                t = 32 + 12 * (n % 2)
                n += 1
                for r in range(8):
                    a(f"v_mul_f32 v{t + r}, v{AV + 16 * i + 8 * gp + r}, v{ACC + (2 * i + j) * 16 + 8 * gp + r}")
                for r in range(4):
                    a(f"v_cvt_pk_bf16_f32 v{t + 8 + r}, v{t + 2 * r}, v{t + 2 * r + 1}")
                a(f"buffer_store_dwordx4 {vr(t + 8, 4)}, v{EO + j}, s[24:27], s{40 + i} offen offset:{640 * gp} {OPT.get('wt_v', WT)}")
    a.stamp(6)
    if a.prof == 1:
        a("s_waitcnt vmcnt(0)")
    a.stamp(7)
    a.dump(0, "s13")
    a("s_endpgm")

    if slow:
        gen_aux(a, P)


def gen_aux(a, P):
    a.label(f"{P}_aux")
    a(f"""
s_cmp_lg_u32 s11, 15
s_cbranch_scc1 {P}_end
""")
    a.label(f"{P}_aux_cnt")
    a("""
v_lshlrev_b32 v1, 4, v0
v_mov_b32 v4, 0
v_mov_b32 v5, 0
v_mov_b32 v6, 0
v_mov_b32 v7, 0
s_mov_b32 s54, 262144
s_mov_b32 s55, 0x20000
s_mov_b32 s29, 0
s_waitcnt lgkmcnt(0)
s_add_u32 s52, s8, 0xE60000
s_addc_u32 s53, s9, 0
""")
    a.label(f"{P}_aux_cl")
    a(f"""
buffer_store_dwordx4 v[4:7], v1, s[52:55], s29 offen
s_add_u32 s29, s29, 8192
s_cmp_lt_u32 s29, 262144
s_cbranch_scc1 {P}_aux_cl
s_endpgm
""")


def read_list(Fb, ks):
    return [f"ds_read_b128 {vr(Fb, 4)}, v{AA + ks}",
            f"ds_read_b64_tr_b16 {vr(Fb + 8, 2)}, v{AB} offset:{ks * 4096}",
            f"ds_read_b64_tr_b16 {vr(Fb + 10, 2)}, v{AB} offset:{ks * 4096 + 1024}",
            f"ds_read_b64_tr_b16 {vr(Fb + 12, 2)}, v{AB + 1} offset:{ks * 4096}",
            f"ds_read_b64_tr_b16 {vr(Fb + 14, 2)}, v{AB + 1} offset:{ks * 4096 + 1024}",
            f"ds_read_b128 {vr(Fb + 4, 4)}, v{AA + 4 + ks}"]


def gen_step(a, typ, Fb, slow, nxt, waits=True, mid=None):
    n = 0
    for i in range(2):
        for j in range(2):
            if waits and n < 3:
                a(f"s_waitcnt lgkmcnt({[3, 3, 4][n] if nxt else [3, 1, 0][n]})")
            acc = vr(ACC + (2 * i + j) * 16, 16)
            xa, wb = vr(Fb + 4 * i, 4), vr(Fb + 8 + 4 * j, 4)
            if typ == "qk":
                a(f"v_mfma_f32_32x32x16_bf16 {acc}, {wb}, {xa}, {acc}")
            else:
                a(f"v_mfma_f32_32x32x16_bf16 {acc}, {xa}, {wb}, {acc}")
            if mid and n == 0:
                mid()
            for r in nxt[2 * n:2 * n + 2]:
                a(r)
            n += 1
    if slow:
        for r in range(4):
            a(f"v_dot2_f32_bf16 v{ST + r % 2}, v{Fb + r}, s36, v{ST + r % 2}")
            a(f"v_dot2_f32_bf16 v{ST + 2 + r % 2}, v{Fb + r}, v{Fb + r}, v{ST + 2 + r % 2}")
            a(f"v_dot2_f32_bf16 v{ST + 4 + r % 2}, v{Fb + 8 + r}, s36, v{ST + 4 + r % 2}")


def gen_mainloop(a, P, typ, slow, before_last):
    a.stamp(2)
    a("s_barrier")
    a.stamp(3)
    for r in read_list(F[0], 0):
        a(r)
    a.label(f"{P}_loop_{typ}")
    for ks in range(3):
        gen_step(a, typ, F[ks % 2], slow, read_list(F[(ks + 1) % 2], ks + 1))
    a(f"""
s_add_u32 s37, s37, 1
s_mov_b32 s39, 32768
s_cmp_eq_u32 s37, 5
s_cmov_b32 s39, {(-131072) & 0xffffffff}
""")
    for r in range(10):
        a(f"v_add_u32 v{AA + r}, s39, v{AA + r}")
    a(f"""
s_cmp_eq_u32 s37, 10
s_waitcnt lgkmcnt(0)
s_cbranch_scc1 {P}_last_{typ}
""")
    gen_step(a, typ, F[1], slow, read_list(F[0], 0), waits=False, mid=lambda: a("s_barrier"))
    a(f"s_branch {P}_loop_{typ}")
    a.label(f"{P}_last_{typ}")
    a.stamp(4)
    if before_last:
        before_last()
    gen_step(a, typ, F[1], slow, [], waits=False)
```

```python
import sys
from asmlib import Asm, fix_hazards, kernel_desc
import gen_qkv as GQ
import gen_opq as GO
import gen_att as GA

HDR = open("interleave_layers__sliding_block__mha_block__prompt.s.ref").read().split("; Override launch")[0]


def build(verbose=False, prof=0):
    launches = ["; @launch kernel=qkv0_kernel grid=(256,1,1) block=(512,1,1) lds=163840"]
    for l in range(4):
        launches.append(f"; @launch kernel=fus{l}_kernel grid=(256,1,1) block=(576,1,1) lds=163840")
    a = Asm(prof)
    GQ.gen_qkv_stub(a, 0)
    GQ.gen_qkv_body(a, True)
    GA.gen_att(a, "A")
    GA.gen_att(a, "B")
    GO.gen_opq(a)
    body = fix_hazards(a.lines, verbose)
    out = [HDR.rstrip("\n")] + launches
    out.append('.amdgcn_target "amdgcn-amd-amdhsa--gfx950"')
    out.append(".text")
    out += body
    out.append("code_end:")
    out.append('.section .rodata,"a"')
    out.append(kernel_desc("qkv0_kernel", GQ.QKV_VGPRS))
    for l in range(4):
        out.append(kernel_desc(f"fus{l}_kernel", GO.FUSED_VGPRS))
    return "\n".join(out) + "\n"


if __name__ == "__main__":
    import ast
    for arg in sys.argv[2:]:
        if "=" in arg:
            kx, vx = arg.split("=", 1)
            try:
                vx = ast.literal_eval(vx)
            except Exception:
                pass
            GQ.OPT[kx] = vx
    if "prioB" in GQ.OPT: GA.PRIO_SWITCH["B"] = GQ.OPT["prioB"]
    if "prioA" in GQ.OPT: GA.PRIO_SWITCH["A"] = GQ.OPT["prioA"]
    dst = sys.argv[1] if len(sys.argv) > 1 else "interleave_layers__sliding_block__mha_block__prompt.s"
    open(dst, "w").write(build(verbose="-v" in sys.argv, prof=(1 if "-p" in sys.argv else 2 if "-t" in sys.argv else 0)))
```

```python
from asmlib import Asm
from gen_qkv import WS_OT, WS_QI, WS_KV, WS_WOT, WS_CS, OPT, lofs, vr, f32
from gen_opq import WS_CNT, OA, OSING

ATT_VGPRS = {"A": 144, "B": 112}
ATT_LDS = {"A": 40960, "B": 163840}
NEGBIG = f32(-1e30)

VH, VM, AK1, AK2, AV, VO = 1, 2, 3, 4, 5, 6
Q1, Q2, K2, K1, VA = 8, 12, 14, 16, 20
VB = [24, 28]
E, P, O = 32, 40, 48
IDX = 47
VO2 = 46
SB = [64, 80]
NEG, CD, CF = 96, 112, 128
TS = 2560
PRIO_SWITCH = {"A": 7, "B": 13}


def gen_att(a, typ):
    L = lambda s: f"att{typ}_{s}"
    l0 = 0 if typ == "A" else 1
    for layer in (l0 + 2, l0):
        name = f"fus{layer}_kernel"
        a.raw(f".globl {name}")
        a.raw(".p2align 8")
        a.raw(f".type {name},@function")
        a.label(name)
        a(f"s_load_dwordx2 s[4:5], s[0:1], {0 if layer == 0 else 64}")
        a(f"s_load_dwordx2 s[52:53], s[0:1], {48 if layer == 3 else 64}")
        a(f"s_mov_b32 s10, {lofs(layer)}")
        a(f"s_mov_b32 s54, {(1 if layer == 0 else 0) + (2 if layer == 3 else 0)}")
        a(f"s_mov_b32 s57, {WS_CNT + 65536 * layer}")
        a(f"s_mov_b32 s58, {lofs(layer + 1) if layer < 3 else 0}")
        if layer != l0:
            a(f"s_branch {L('body')}")
    a.label(L("body"))
    LB = OA if typ == "A" else 0
    a(f"s_mov_b32 s55, {WS_WOT[l0]}")
    a(f"s_mov_b32 s56, {WS_CS[1 - l0]}")
    a(f"s_mov_b32 s59, {l0}")
    kidx = 1 if typ == "A" else 3
    a.stamp(0, real=True)
    a.stamp(1)
    a(f"""
s_load_dwordx2 s[8:9], s[0:1], 64
s_load_dwordx2 s[6:7], s[0:1], {32 if typ == 'A' else 8}
s_cmp_ge_u32 s2, 256
s_cbranch_scc1 {L('end')}
s_and_b32 s11, s2, 7
s_lshl_b32 s11, s11, 2
s_lshr_b32 s28, s2, 3
s_and_b32 s28, s28, 3
s_add_u32 s11, s11, s28
s_lshr_b32 s12, s2, 5
v_lshrrev_b32 v1, 6, v0
v_and_b32 v0, 63, v0
v_readfirstlane_b32 s13, v1
s_mul_i32 s28, s11, 163840
s_add_u32 s28, s28, {WS_KV}
s_add_u32 s28, s28, s10
""")
    if typ == "A":
        a(f"""
s_mul_i32 s29, s12, {8 * TS}
s_add_u32 s28, s28, s29
s_sub_u32 s28, s28, {8 * TS}
""")
    NFIRST = 5 if typ == "A" else 2
    a(f"""
s_mov_b32 s18, {ATT_LDS[typ]}
s_mov_b32 s19, 0x20000
v_lshlrev_b32 v{AK1}, 4, v0
s_mul_i32 s30, s13, {NFIRST * 1024}
s_waitcnt lgkmcnt(0)
s_add_u32 s16, s8, s28
s_addc_u32 s17, s9, 0
s_cmp_eq_u32 s13, 8
s_cbranch_scc0 {L('comp')}
""")

    def issue_groups(n, lab, throttle):
        a(f"s_mov_b32 s31, {n}")
        a.label(L(lab))
        if throttle:
            a("s_waitcnt vmcnt(59)")
        a("s_mov_b32 m0, s30")
        a("s_sub_u32 s31, s31, 1")
        for j in range(4):
            a(f"buffer_load_dwordx4 v{AK1}, s[16:19], s30 offen offset:{1024 * j} lds")
        a("s_add_u32 s30, s30, 4096")
        a("s_cmp_lg_u32 s31, 0")
        a(f"s_cbranch_scc1 {L(lab)}")

    def prefetch(wo=True):
        a(f"""
s_add_u32 s20, s8, {WS_WOT[0 if typ == 'A' else 1]}
s_addc_u32 s21, s9, 0
s_mov_b32 s22, 819200
s_mov_b32 s23, 0x20000
s_mov_b32 s24, s6
s_mov_b32 s25, s7
s_mov_b32 s26, 2457600
s_mov_b32 s27, 0x20000
s_lshr_b32 s28, s2, 3
v_lshlrev_b32 v8, 7, v0
s_lshl_b32 s29, s28, 15
""")
        for j in range(4 if wo else 0):
            a(f"s_add_u32 s33, s29, {8192 * j}")
            a(f"buffer_load_dword v{10 + j}, v8, s[20:23], s33 offen")
        a("""
v_lshrrev_b32 v8, 4, v0
v_mul_u32_u24 v8, 3840, v8
v_and_b32 v9, 15, v0
v_lshl_add_u32 v8, v9, 7, v8
s_mul_i32 s29, s28, 76800
s_and_b32 s33, s2, 1
s_lshl_b32 s33, s33, 11
s_add_u32 s29, s29, s33
""")
        for j in range(5):
            a(f"s_add_u32 s33, s29, {4 * 3840 * j}")
            a(f"buffer_load_dword v{16 + j}, v8, s[24:27], s33 offen")

    if typ == "A":
        a("""
s_mul_i32 s29, s12, 102400
s_add_u32 s29, s29, s55
s_add_u32 s16, s8, s29
s_addc_u32 s17, s9, 0
s_mov_b32 s18, 102400
s_mov_b32 s30, 0
""")
        nw0 = OPT.get("wo_early", 12)
        if nw0:
            issue_groups(nw0, "ldw0", False)
        a("s_barrier")
        issue_groups(25 - nw0, "ldw1", True)
        prefetch(False)
        a("s_barrier")
        a("s_barrier")
        a("s_waitcnt vmcnt(0)")
        a("s_barrier")
        a("s_branch opq_w8")
    else:
        issue_groups(5, "ld0", False)
        pass
        a("s_barrier")
        pass
        issue_groups(21, "ld1", True)
        a("s_waitcnt vmcnt(60)")
        pass
        a("s_barrier")
        pass
        issue_groups(10, "ld2", True)
        a("s_waitcnt vmcnt(0)")
        pass
        prefetch()
        a("s_barrier")
        a("s_barrier")
        a("s_barrier")
        a("s_barrier")
        a("s_branch opq_w8")
    a.label(L("end"))
    a("s_endpgm")

    a.label(L("comp"))
    a(f"s_add_u32 m0, s30, {LB}")
    a(f"""
s_mul_i32 s28, s11, 81920
""")
    for j in range(min(NFIRST, 4)):
        a(f"buffer_load_dwordx4 v{AK1}, s[16:19], s30 offen offset:{1024 * j} lds")
    if NFIRST == 5:
        a("s_add_u32 s30, s30, 4096")
        a(f"s_add_u32 m0, s30, {LB}")
        a("s_nop 0")
        a(f"buffer_load_dwordx4 v{AK1}, s[16:19], s30 offen lds")
    a(f"""
s_mul_i32 s29, s12, {8 * 1280}
s_add_u32 s28, s28, s29
s_mul_i32 s29, s13, 1280
s_add_u32 s28, s28, s29
s_add_u32 s28, s28, {WS_QI}
s_add_u32 s28, s28, s10
s_mov_b32 s22, 1280
s_mov_b32 s23, 0x20000
v_lshlrev_b32 v7, 3, v0
v_add_u32 v7, 1024, v7
s_add_u32 s20, s8, s28
s_addc_u32 s21, s9, 0
buffer_load_dwordx4 {vr(Q1, 4)}, v{AK1}, s[20:23], 0 offen
buffer_load_dwordx2 {vr(Q2, 2)}, v7, s[20:23], 0 offen
s_add_u32 s29, s10, {WS_OT}
s_mov_b32 s26, 2621440
s_mov_b32 s27, 0x20000
s_add_u32 s24, s8, s29
s_addc_u32 s25, s9, 0
v_lshrrev_b32 v{VH}, 5, v0
v_and_b32 v{VM}, 31, v0
v_and_b32 v7, 0x33, v0
v_and_b32 v{AV}, 4, v0
v_lshl_add_u32 v7, v{AV}, 1, v7
v_and_b32 v{AV}, 8, v0
v_lshrrev_b32 v{AV}, 1, v{AV}
v_add_u32 v7, v{AV}, v7
v_lshlrev_b32 v{AK1}, 4, v7
v_and_b32 v7, 31, v7
v_lshlrev_b32 v{AK2}, 3, v7
v_add_u32 v{AK2}, 2304, v{AK2}
v_mul_u32_u24 v{AV}, 320, v{VH}
v_lshl_add_u32 v{AV}, v{VM}, 4, v{AV}
v_add_u32 v{AV}, 1024, v{AV}
s_lshl_b32 s28, s12, 8
s_lshl_b32 s29, s13, 5
s_add_u32 s28, s28, s29
v_add_u32 v{VO2}, s28, v{VM}
v_lshlrev_b32 v{VO2}, 3, v{VO2}
v_lshlrev_b32 v{VO}, 3, v{VH}
v_lshl_add_u32 v{VO}, v{VO2}, 1, v{VO}
s_mov_b32 s32, 0x000fffff
s_mov_b32 s33, 0x000fffff
s_lshl_b32 s39, s11, 16
s_add_u32 s34, s39, 32768
s_lshl_b32 s35, s11, 14
s_add_u32 s35, s35, {OSING}
s_mov_b32 s48, 0
v_mov_b32 v{IDX}, 0xdddddddd
s_mov_b32 s49, 99
s_cmp_lt_u32 s13, 4
s_cmov_b32 s49, {PRIO_SWITCH[typ]}
s_setprio 1
s_cbranch_scc0 {L('prio')}
s_setprio 2
""")
    a.label(L("prio"))
    a(f"v_cmp_{OPT.get('ones_cmp', 'eq')}_u32 s[40:41], 20, v{VM}")
    a(f"v_mov_b32 v{E}, 0")
    a(f"v_mov_b32 v{E + 1}, 0x3f803f80")
    for r in range(12):
        a(f"v_cndmask_b32 v{VA + r}, v{E}, v{E + 1}, s[40:41]")
    if typ == "A":
        a(f"""
s_mul_i32 s28, s13, {TS}
s_add_u32 s28, s28, {LB}
v_add_u32 v{AK1}, s28, v{AK1}
v_add_u32 v{AK2}, s28, v{AK2}
v_add_u32 v{AV}, s28, v{AV}
s_add_u32 s36, s13, 1
s_cmp_eq_u32 s12, 0
s_cselect_b32 s36, s36, 99
v_lshlrev_b32 v7, 3, v{VH}
v_sub_u32 v7, v{VM}, v7
v_mov_b32 v{E}, {NEGBIG}
v_mov_b32 v{E + 1}, 0
""")
        for j in range(16):
            g, r = j // 4, j % 4
            c = 16 * (g // 2) + 4 * (g % 2) + r
            sp = 40 + 2 * (j % 4)
            a(f"v_cmp_le_i32 s[{sp}:{sp + 1}], {c}, v7")
            if j % 4 == 3:
                for jj in range(j - 3, j + 1):
                    sq = 40 + 2 * (jj % 4)
                    a(f"v_cndmask_b32 v{CD + jj}, v{E}, v{E + 1}, s[{sq}:{sq + 1}]")
                    a(f"v_cndmask_b32 v{CF + jj}, v{E + 1}, v{E}, s[{sq}:{sq + 1}]")
    else:
        a("s_mov_b32 s36, 1")
        a("s_mov_b32 s37, 5")
    first = 8 * TS if typ == "A" else 0
    step = -TS if typ == "A" else TS

    def readK(off):
        a(f"ds_read_b128 {vr(K1, 4)}, v{AK1} offset:{off}")
        a(f"ds_read_b64 {vr(K2, 2)}, v{AK2} offset:{off}")

    def readV(off, vb):
        a("s_mov_b64 exec, s[32:33]")
        a(f"ds_read_b128 {vr(VA, 4)}, v{AV} offset:{off}")
        a(f"ds_read_b128 {vr(vb, 4)}, v{AV} offset:{off + 640}")
        a("s_mov_b64 exec, -1")

    def max16(dst, src, init=None):
        if init is None:
            a(f"v_max3_f32 v{dst}, v{src}, v{src + 1}, v{src + 2}")
            a(f"v_max_f32 v{dst}, v{dst}, v{src + 3}")
            lo = 4
        else:
            lo = 0
        for r in range(lo, 16, 2):
            a(f"v_max3_f32 v{dst}, v{dst}, v{src + r}, v{src + r + 1}")

    def zero_state():
        for r in range(16):
            a(f"v_mov_b32 v{O + r}, 0")
        for r in range(8):
            a(f"v_mov_b32 v{E + r}, 0")

    c0 = vr(CD, 16) if typ == "A" else "0"
    pass
    a("s_waitcnt vmcnt(0)")
    a("s_barrier")
    pass
    readK(first)
    a("s_waitcnt lgkmcnt(0)")
    a(f"v_mfma_f32_32x32x16_bf16 {vr(SB[0], 16)}, {vr(K1, 4)}, {vr(Q1, 4)}, {c0}")
    a(f"v_mfma_f32_32x32x8_bf16 {vr(SB[0], 16)}, {vr(K2, 2)}, {vr(Q2, 2)}, {vr(SB[0], 16)}")
    zero_state()
    max16(7, SB[0])
    a.label(L("have_m"))
    readK(first + step)
    readV(first, VB[0])
    a(f"""
v_mov_b32 v{P}, v7
v_permlane32_swap_b32 v{P}, v7
v_max_f32 v7, v7, v{P}
v_sub_f32 v7, 0, v7
""")
    for r in range(16):
        a(f"v_mov_b32 v{NEG + r}, v7")
    for r in range(16):
        a(f"v_add_f32 v{SB[0] + r}, v7, v{SB[0] + r}")
    if typ == "A":
        for r in range(16):
            a(f"v_add_f32 v{CF + r}, v7, v{CF + r}")
    pass

    def tile(t, koff, voff, cblk, last=False):
        cur, nxt = SB[t % 2], SB[(t + 1) % 2]
        if not last:
            a("s_waitcnt lgkmcnt(2)")
            a(f"v_mfma_f32_32x32x16_bf16 {vr(nxt, 16)}, {vr(K1, 4)}, {vr(Q1, 4)}, {vr(cblk, 16)}")
        for r in range(4):
            a(f"v_exp_f32 v{cur + r}, v{cur + r}")
        a(f"v_smfmac_f32_32x32x32_bf16 {vr(O, 16)}, {vr(VB[(t + 1) % 2], 4)}, {vr(E, 8)}, v{IDX}")
        for r in range(4):
            a(f"v_exp_f32 v{cur + 4 + r}, v{cur + 4 + r}")
        if not last:
            a(f"v_mfma_f32_32x32x8_bf16 {vr(nxt, 16)}, {vr(K2, 2)}, {vr(Q2, 2)}, {vr(nxt, 16)}")
        if koff is not None:
            readK(koff)
        for r in range(4):
            a(f"v_exp_f32 v{E + r}, v{cur + 8 + r}")
        a(f"s_waitcnt lgkmcnt({2 if koff is not None else 0})")
        a(f"v_smfmac_f32_32x32x32_bf16 {vr(O, 16)}, {vr(VA, 4)}, {vr(cur, 8)}, v{IDX}")
        if voff is not None:
            readV(voff, VB[(t + 1) % 2])
        for r in range(4):
            a(f"v_exp_f32 v{E + 4 + r}, v{cur + 12 + r}")

    if typ == "B":
        a("s_mov_b32 s38, 0")
        a.label(L("loop"))
        a(f"""
s_cmp_eq_u32 s38, s49
s_cbranch_scc0 {L('noprio')}
s_setprio 0
""")
        a.label(L("noprio"))
        a(f"""
s_cmp_eq_u32 s38, s36
s_cbranch_scc1 {L('bar')}
s_cmp_eq_u32 s38, s37
s_cbranch_scc0 {L('nobar')}
""")
        a.label(L("bar"))
        a("s_barrier")
        a.label(L("nobar"))
        for t in range(4):
            tile(t, (t + 2) * TS, (t + 1) * TS, NEG)
        a(f"""
v_add_u32 v{AK1}, {4 * TS}, v{AK1}
v_add_u32 v{AK2}, {4 * TS}, v{AK2}
v_add_u32 v{AV}, {4 * TS}, v{AV}
s_add_u32 s38, s38, 1
s_cmp_lt_u32 s38, 16
s_cbranch_scc1 {L('loop')}
""")
        tlast = 63
    else:
        for t in range(9):
            if t < 8:
                a(f"s_cmp_lg_u32 s36, {t + 1}")
                a(f"s_cbranch_scc1 {L('nofix%d' % t)}")
                a(f"s_call_b64 s[50:51], {L('fix')}")
                a.label(L("nofix%d" % t))
            if t == PRIO_SWITCH["A"]:
                a(f"s_cmp_eq_u32 s49, {t}")
                a(f"s_cbranch_scc0 {L('noprio')}")
                a("s_setprio 0")
                a.label(L("noprio"))
            koff = (8 - (t + 2)) * TS if t + 2 <= 8 else None
            voff = (8 - (t + 1)) * TS if t + 1 <= 8 else None
            tile(t, koff, voff, CF if t + 1 == 8 else NEG, last=(t == 8))
        tlast = 8
    pass
    a(f"v_smfmac_f32_32x32x32_bf16 {vr(O, 16)}, {vr(VB[tlast % 2], 4)}, {vr(E, 8)}, v{IDX}")
    a("s_waitcnt lgkmcnt(0)")
    a(f"""
v_mov_b32 v{P}, v{O + 8}
v_mov_b32 v{P + 1}, v{O + 8}
v_permlane32_swap_b32 v{P}, v{P + 1}
v_mul_f32 v{P + 2}, 0, v{P + 1}
""")
    for r in range(12):
        a(f"v_fmac_f32 v{P + 2}, 0, v{O + r}")
    a(f"""
v_rcp_f32 v{P + 1}, v{P + 1}
v_cmp_u_f32 vcc, v{P + 2}, v{P + 2}
s_cmp_eq_u32 s48, 0
s_cselect_b64 s[40:41], vcc, 0
s_cmp_lg_u64 s[40:41], 0
s_cbranch_scc1 {L('slow')}
""")
    for r in range(12):
        a(f"v_mul_f32 v{O + r}, v{P + 1}, v{O + r}")
    for r in range(6):
        a(f"v_cvt_pk_bf16_f32 v{E + r}, v{O + 2 * r}, v{O + 2 * r + 1}")
    a(f"""
buffer_store_dwordx2 {vr(E, 2)}, v{VO}, s[24:27], s39 offen {OPT.get('wt_att', 'sc0 sc1')}
buffer_store_dwordx2 {vr(E + 2, 2)}, v{VO}, s[24:27], s34 offen {OPT.get('wt_att', 'sc0 sc1')}
s_mov_b32 exec_hi, 0
buffer_store_dwordx2 {vr(E + 4, 2)}, v{VO2}, s[24:27], s35 offen {OPT.get('wt_att', 'sc0 sc1')}
""")
    a("s_branch opq_entry")

    a.label(L("slow"))
    a("s_mov_b32 s48, 1")
    a(f"v_mov_b32 v7, {NEGBIG}")
    zero_state()

    def slow_tile(off, c):
        readK(off)
        a("s_waitcnt lgkmcnt(0)")
        a(f"v_mfma_f32_32x32x16_bf16 {vr(SB[0], 16)}, {vr(K1, 4)}, {vr(Q1, 4)}, {c}")
        a(f"v_mfma_f32_32x32x8_bf16 {vr(SB[0], 16)}, {vr(K2, 2)}, {vr(Q2, 2)}, {vr(SB[0], 16)}")
        max16(7, SB[0], init=True)

    if typ == "B":
        a(f"""
s_mov_b32 s36, 99
s_mov_b32 s37, 99
s_mov_b32 s38, 0
v_subrev_u32 v{AV}, {64 * TS}, v{AV}
""")
        a.label(L("slow_loop"))
        a(f"v_subrev_u32 v{AK1}, {TS}, v{AK1}")
        a(f"v_subrev_u32 v{AK2}, {TS}, v{AK2}")
        slow_tile(0, "0")
        a(f"""
s_add_u32 s38, s38, 1
s_cmp_lt_u32 s38, 64
s_cbranch_scc1 {L('slow_loop')}
s_branch {L('have_m')}
""")
    else:
        for r in range(16):
            a(f"v_sub_f32 v{CF + r}, {NEGBIG}, v{CD + r}")
        for p in range(8, 0, -1):
            a(f"s_cmp_ge_u32 {p}, s36")
            a(f"s_cbranch_scc1 {L('sskip%d' % p)}")
            slow_tile((8 - p) * TS, vr(CF, 16) if p == 8 else "0")
            a.label(L("sskip%d" % p))
        slow_tile(8 * TS, vr(CD, 16))
        a(f"s_branch {L('have_m')}")
        a.label(L("fix"))
        a("s_nop 7")
        for r in range(16):
            a(f"v_mov_b32 v{NEG + r}, {NEGBIG}")
        for r in range(16):
            a(f"v_mov_b32 v{CF + r}, {NEGBIG}")
        a("s_nop 1")
        a("s_setpc_b64 s[50:51]")
```

```python
from asmlib import Asm
import gen_qkv as Q
from gen_qkv import WS_X, WS_OT, WS_QI, WS_KV, WS_ST, QI_BYTES, KV_BYTES, QSCALE, OPT, vr, f32

WS_CNT = 0xE60000
FUSED_VGPRS = 168
OA = 102400
PSTR = 336
PHALF = 64 * PSTR
QA = 81920
CH = 20480
OSING = 0x200000
WT = "sc0 sc1"
NW8 = 11
LD = "sc1"


def signal(a, lab, st_base, nline):
    a(f"""
s_cmp_lg_u32 s13, 0
s_cbranch_scc1 {lab}_sdone
s_add_u32 s60, s8, s57
s_addc_u32 s61, s9, 0
s_mov_b32 s62, 65536
s_mov_b32 s63, 0x20000
v_lshlrev_b32 v1, 7, v0
v_mov_b32 v167, 1
s_mov_b32 exec_lo, {hex((1 << nline) - 1)}
s_mov_b32 exec_hi, 0
buffer_store_dword v167, v1, s[60:63], {st_base} offen sc0 sc1
s_mov_b64 exec, -1
""")
    a.label(f"{lab}_sdone")


def wait_flags(a, lab, own_line, nword):
    a(f"""
s_cmp_lg_u32 s13, 0
s_cbranch_scc1 {lab}_done
s_add_u32 s60, s8, s57
s_addc_u32 s61, s9, 0
s_mov_b32 s62, 65536
s_mov_b32 s63, 0x20000
v_lshlrev_b32 v1, 2, v0
s_mov_b32 exec_lo, {hex((1 << nword) - 1)}
s_mov_b32 exec_hi, 0
s_mov_b32 s3, 0
""")
    for k in range(3):
        a(f"buffer_load_dword v{164 + k}, v1, s[60:63], {own_line} offen sc0 sc1")
        a("s_sleep 2")
    a.label(f"{lab}_poll")
    for k in range(4):
        a(f"""
buffer_load_dword v{164 + (k + 3) % 4}, v1, s[60:63], {own_line} offen sc0 sc1
s_waitcnt vmcnt(3)
v_cmp_eq_u32 vcc, 0, v{164 + k}
s_cbranch_vccz {lab}_out
""")
    a(f"""
s_add_u32 s3, s3, 1
s_cmp_lt_u32 s3, 0x40000
s_cbranch_scc1 {lab}_poll
""")
    a.label(f"{lab}_out")
    a("s_mov_b64 exec, -1")
    a.label(f"{lab}_done")


def gen_opq(a):
    global NW8
    NW8 = OPT.get('nw8', NW8)
    VA1, VA2, AW0, AW1, PW, PR1, PR2 = 4, 5, 6, 7, 8, 9, 10
    VXI, VXO, VS = 11, 13, 15
    XR, ACC, AR, WS0 = 16, 24, 44, 84
    a.raw(".p2align 6")
    a.label("opq_entry")
    a("""
s_mov_b64 exec, -1
s_setprio 0
s_barrier
""")
    a.stamp(2)
    a(f"""
s_and_b32 s14, s13, 3
s_lshr_b32 s15, s13, 2
v_lshlrev_b32 v2, 4, v0
s_and_b32 s39, s15, s59
s_cmp_eq_u32 s39, 0
s_cbranch_scc1 opq_nowo1
s_mul_i32 s29, s12, 102400
s_add_u32 s29, s29, s55
s_add_u32 s20, s8, s29
s_addc_u32 s21, s9, 0
s_mov_b32 s22, 102400
s_mov_b32 s23, 0x20000
s_mul_i32 s38, s14, 25600
""")

    def lin_dma(n0, n1, srd, base):
        n = n0
        while n < n1:
            a(f"s_add_u32 s31, {base}, {1024 * n}")
            a("s_mov_b32 m0, s31")
            k = min(4, n1 - n)
            for j in range(k):
                a(f"buffer_load_dwordx4 v2, {srd}, s31 offen offset:{1024 * j} lds")
            n += k

    lin_dma(0, 8, "s[20:23]", "s38")
    a("s_waitcnt vmcnt(8)")
    a("s_branch opq_e2")
    a.label("opq_nowo1")
    a("s_waitcnt vmcnt(0)")
    a.label("opq_e2")
    a("""
s_barrier
s_lshl_b32 s28, s12, 12
s_lshl_b32 s29, s11, 2
s_add_u32 s28, s28, s29
""")
    a.stamp(3)
    signal(a, "opq_s1", "s28", 32)
    a("""
s_cmp_eq_u32 s39, 0
s_cbranch_scc1 opq_nowo2
""")
    lin_dma(8, 25, "s[20:23]", "s38")
    a.label("opq_nowo2")
    a(f"""
s_mul_i32 s28, s11, 81920
s_mul_i32 s29, s12, 5120
s_add_u32 s28, s28, s29
s_mul_i32 s29, s11, 81920
s_mul_i32 s30, s12, 160
s_add_u32 s29, s29, s30
s_add_u32 s30, s28, s10
s_mov_b32 s26, 46080
s_bitcmp1_b32 s54, 0
s_cselect_b64 s[34:35], -1, 0
s_cmov_b32 s30, s29
s_cmov_b32 s26, 80800
s_add_u32 s24, s4, s30
s_addc_u32 s25, s5, 0
s_mov_b32 s27, 0x20000
s_add_u32 s30, s28, s58
s_mov_b32 s42, 46080
s_mov_b32 s46, 0xffff
s_mov_b32 s47, 0
s_bitcmp1_b32 s54, 1
s_cselect_b64 s[36:37], -1, 0
s_cmov_b32 s30, s29
s_cmov_b32 s42, 80800
s_cmov_b32 s46, 0x03030303
s_cmov_b32 s47, 0x03030303
s_add_u32 s40, s52, s30
s_addc_u32 s41, s53, 0
s_mov_b32 s43, 0x20000
v_lshrrev_b32 v46, 3, v0
v_and_b32 v47, 7, v0
v_cndmask_b32 v44, v47, v46, s[36:37]
v_cndmask_b32 v45, v46, v47, s[36:37]
s_lshl_b32 s29, s13, 3
v_add_u32 v48, s29, v44
v_mul_u32_u24 v49, 1280, v48
v_lshl_add_u32 v50, v45, 4, v49
v_add_u32 v51, 128, v50
s_mul_i32 s29, s15, 40960
s_lshl_b32 s28, s14, 7
s_add_u32 s29, s29, s28
v_lshlrev_b32 v52, 9, v45
v_lshl_add_u32 v52, v44, 4, v52
v_add_u32 v52, s29, v52
v_add_u32 v53, 4096, v52
v_cndmask_b32 v{VXI}, v52, v50, s[34:35]
v_cndmask_b32 v{VXI + 1}, v53, v51, s[34:35]
v_cndmask_b32 v{VXO}, v52, v50, s[36:37]
v_cndmask_b32 v{VXO + 1}, v53, v51, s[36:37]
buffer_load_dwordx4 {vr(XR, 4)}, v{VXI}, s[24:27], 0 offen
s_mov_b64 exec, s[46:47]
buffer_load_dwordx4 {vr(XR + 4, 4)}, v{VXI + 1}, s[24:27], 0 offen
s_mov_b64 exec, -1
v_mul_u32_u24 v49, {PSTR}, v48
v_add_u32 v49, {OA}, v49
v_lshl_add_u32 v{PR1}, v45, 5, v49
v_add_u32 v{PR2}, 256, v{PR1}
s_lshl_b32 s29, s11, 3
s_add_u32 s29, s29, s12
s_lshl_b32 s29, s29, 9
v_lshl_add_u32 v{VS}, v48, 3, s29
s_add_u32 s28, s58, {WS_ST}
s_add_u32 s48, s8, s28
s_addc_u32 s49, s9, 0
s_mov_b32 s50, 0x20000
s_mov_b32 s51, 0x20000
v_lshrrev_b32 v44, 4, v0
v_and_b32 v45, 15, v0
s_lshl_b32 s28, s14, 4
v_add_u32 v45, s28, v45
v_mul_u32_u24 v{PW}, {PSTR}, v45
v_lshl_add_u32 v{PW}, v44, 4, v{PW}
s_mul_i32 s28, s15, {PHALF}
s_add_u32 s28, s28, {OA}
v_add_u32 v{PW}, s28, v{PW}
s_lshl_b32 s28, s11, 6
v_add_u32 v45, s28, v45
v_lshlrev_b32 v{VA1}, 15, v44
v_lshl_add_u32 v{VA1}, v45, 4, v{VA1}
v_lshlrev_b32 v{VA2}, 14, v44
v_lshl_add_u32 v{VA2}, v45, 3, v{VA2}
s_lshl_b32 s28, s15, 17
v_add_u32 v{VA1}, s28, v{VA1}
v_add_u32 v{VA2}, s28, v{VA2}
v_lshrrev_b32 v44, 2, v0
v_and_b32 v45, 3, v0
v_mul_u32_u24 v44, 160, v44
v_lshl_add_u32 v44, v45, 3, v44
s_mul_i32 s28, s15, 5120
v_add_u32 v{AW0}, s28, v44
v_add_u32 v{AW1}, 61440, v{AW0}
s_add_u32 s28, s10, {WS_OT}
s_add_u32 s16, s8, s28
s_addc_u32 s17, s9, 0
s_mov_b32 s18, 2621440
s_mov_b32 s19, 0x20000
s_mov_b32 s38, 0x3f803f80
s_and_b32 s29, s2, 7
s_lshl_b32 s29, s29, 12
s_lshr_b32 s30, s2, 3
s_lshl_b32 s30, s30, 7
s_add_u32 s29, s29, s30
""")
    for r in range(20):
        a(f"v_mov_b32 v{ACC + r}, 0")
    a("s_waitcnt vmcnt(0)")
    wait_flags(a, "opq_s1", "s29", 32)
    a("s_barrier")
    a.stamp(4)
    for i in range(8):
        a(f"s_mov_b32 s28, {i * 262144}")
        a(f"buffer_load_dwordx4 {vr(AR + 4 * i, 4)}, v{VA1}, s[16:19], s28 offen {LD}")
    for i in range(2):
        for rho in range(2):
            a(f"s_mov_b32 s28, {OSING + i * 262144 + rho * 65536}")
            a(f"buffer_load_dwordx2 {vr(AR + 32 + 4 * i + 2 * rho, 2)}, v{VA2}, s[16:19], s28 offen {LD}")

    def wread(j):
        i, t, rho = j // 10, (j % 10) // 2, j % 2
        reg = WS0 + 20 * (i % 4) + 4 * t + 2 * rho
        base, off = (AW0, i * 10240) if i < 6 else (AW1, (i - 6) * 10240)
        a(f"ds_read_b64_tr_b16 {vr(reg, 2)}, v{base} offset:{off + rho * 2560 + t * 32}")

    for j in range(40):
        if j >= 14 and j % 4 == 2:
            a("s_waitcnt lgkmcnt(10)")
        wread(j)
    for n in range(50):
        i, t = n // 5, n % 5
        issued = min(100, 40 + 2 * n)
        allowed = min(13, issued - (2 * n + 2))
        if t == 0:
            a(f"s_waitcnt vmcnt({[11, 10, 9, 8, 7, 6, 5, 4, 2, 0][i]}) lgkmcnt({allowed})")
        else:
            a(f"s_waitcnt lgkmcnt({allowed})")
        acc = vr(ACC + 4 * t, 4)
        a(f"v_mfma_f32_16x16x32_bf16 {acc}, {vr(WS0 + 20 * (i % 4) + 4 * t, 4)}, {vr(AR + 4 * i, 4)}, {acc}")
        if 40 + 2 * n < 100:
            wread(40 + 2 * n)
            wread(41 + 2 * n)
    a.stamp(5)
    for t in range(5):
        a(f"ds_write_b128 v{PW}, {vr(ACC + 4 * t, 4)} offset:{64 * t}")
    XF = 100
    for r in range(8):
        a(f"v_lshlrev_b32 v{XF + 2 * r}, 16, v{XR + r}")
        a(f"v_and_b32 v{XF + 2 * r + 1}, 0xffff0000, v{XR + r}")
    a("v_mov_b32 v92, 0")
    a("v_mov_b32 v93, 0")
    a("s_waitcnt lgkmcnt(0)")
    a("s_barrier")
    for p, pr in ((0, PR1), (1, PR2)):
        for g in range(2):
            for hf in range(2):
                a(f"ds_read_b128 {vr(44 + 16 * p + 8 * g + 4 * hf, 4)}, v{pr} offset:{g * PHALF + 16 * hf}")
    for p in range(2):
        b = 44 + 16 * p
        a(f"s_waitcnt lgkmcnt({6 - 4 * p})")
        for r in range(8):
            a(f"v_add_f32 v{XF + 8 * p + r}, v{XF + 8 * p + r}, v{b + r}")
        a(f"s_waitcnt lgkmcnt({4 - 4 * p})")
        for r in range(8):
            a(f"v_add_f32 v{XF + 8 * p + r}, v{XF + 8 * p + r}, v{b + 8 + r}")
        for r in range(4):
            a(f"v_cvt_pk_bf16_f32 v{84 + 4 * p + r}, v{XF + 8 * p + 2 * r}, v{XF + 8 * p + 2 * r + 1}")
    a("s_bitcmp1_b32 s54, 1")
    a("s_cbranch_scc0 opq_wt")
    a(f"buffer_store_dwordx4 {vr(84, 4)}, v{VXO}, s[40:43], 0 offen")
    a("s_mov_b64 exec, s[46:47]")
    a(f"buffer_store_dwordx4 {vr(88, 4)}, v{VXO + 1}, s[40:43], 0 offen")
    a("s_branch opq_fin")
    a.label("opq_wt")
    a(f"buffer_store_dwordx4 {vr(84, 4)}, v{VXO}, s[40:43], 0 offen {WT}")
    a("s_mov_b64 exec, s[46:47]")
    a(f"buffer_store_dwordx4 {vr(88, 4)}, v{VXO + 1}, s[40:43], 0 offen {WT}")
    for p in (1, 0):
        for r in range(4):
            a(f"v_dot2_f32_bf16 v92, v{84 + 4 * p + r}, s38, v92")
            a(f"v_dot2_f32_bf16 v93, v{84 + 4 * p + r}, v{84 + 4 * p + r}, v93")
        if p == 1:
            a("s_mov_b64 exec, -1")
    a(f"""
v_add_f32_dpp v92, v92, v92 row_ror:8 row_mask:0xf bank_mask:0xf
v_add_f32_dpp v93, v93, v93 row_ror:8 row_mask:0xf bank_mask:0xf
v_mov_b32 v94, v92
v_mov_b32 v95, v93
v_permlane16_swap_b32 v94, v92
v_permlane16_swap_b32 v95, v93
v_add_f32 v92, v92, v94
v_add_f32 v93, v93, v95
v_mov_b32 v94, v92
v_mov_b32 v95, v93
v_permlane32_swap_b32 v94, v92
v_permlane32_swap_b32 v95, v93
v_add_f32 v92, v92, v94
v_add_f32 v93, v93, v95
s_mov_b64 exec, 0xff
buffer_store_dwordx2 v[92:93], v{VS}, s[48:51], 0 offen {WT}
s_mov_b64 exec, -1
""")
    a.stamp(6)
    a(f"""
s_lshr_b32 s30, s11, 1
s_lshl_b32 s30, s30, 11
s_and_b32 s31, s11, 1
s_lshl_b32 s31, s31, 3
s_add_u32 s31, s31, s12
s_lshl_b32 s31, s31, 2
s_add_u32 s30, s30, s31
s_add_u32 s30, s30, 32768
s_and_b32 s28, s2, 7
s_lshr_b32 s29, s2, 3
s_lshr_b32 s11, s28, 1
s_lshl_b32 s11, s11, 2
s_and_b32 s12, s29, 3
s_add_u32 s11, s11, s12
s_and_b32 s12, s28, 1
s_lshl_b32 s12, s12, 3
s_lshr_b32 s29, s29, 2
s_add_u32 s12, s12, s29
s_lshl_b32 s31, s11, 4
s_add_u32 s31, s31, s12
s_lshl_b32 s31, s31, 7
s_add_u32 s31, s31, 32768
s_mov_b32 s38, 1.0
s_cmp_lt_u32 s12, 5
s_cmov_b32 s38, {f32(QSCALE)}
s_cmp_ge_u32 s12, 15
s_cbranch_scc1 opq_idle
s_cmp_eq_u32 s15, 0
s_cbranch_scc1 opq_qcons
""")
    VH, VM, VF = 2, 3, 62
    a(f"""
s_lshl_b32 s29, s12, 8
s_add_u32 s20, s6, s29
s_addc_u32 s21, s7, 0
s_sub_u32 s22, 2457600, s29
s_mov_b32 s23, 0x20000
v_lshrrev_b32 v3, 4, v0
v_lshrrev_b32 v4, 2, v0
v_xor_b32 v4, v4, v3
v_and_b32 v4, 3, v4
v_and_b32 v5, 3, v0
s_lshl_b32 s29, s14, 2
v_add_u32 v3, s29, v3
v_mul_u32_u24 v3, 3840, v3
v_lshl_add_u32 v3, v4, 6, v3
v_lshl_add_u32 v3, v5, 4, v3
s_lshl_b32 s35, s14, 10
""")

    def q_b(n0, n1):
        for n in range(n0, n1):
            a(f"s_add_u32 m0, s35, {n * 4096}")
            a(f"s_mov_b32 s34, {n * 16 * 3840}")
            a("buffer_load_dwordx4 v3, s[20:23], s34 offen lds")

    a("s_waitcnt vmcnt(0)")
    a("s_barrier")
    q_b(NW8, 40)
    a(f"""
v_lshrrev_b32 v4, 5, v0
v_and_b32 v5, 31, v0
v_lshlrev_b32 v6, 3, v5
v_lshl_add_u32 v6, v4, 11, v6
s_lshl_b32 s28, s11, 13
s_lshr_b32 s29, s14, 1
s_lshl_b32 s29, s29, 12
s_add_u32 s28, s28, s29
s_and_b32 s29, s14, 1
s_lshl_b32 s29, s29, 8
s_add_u32 s28, s28, s29
s_lshl_b32 s29, s14, 7
v_lshl_add_u32 v7, v5, 2, s29
s_mov_b32 s20, s8
s_mov_b32 s21, s9
s_mov_b32 s22, 0x1000000
s_lshl_b32 s36, s12, 10
s_add_u32 s36, s36, s56
s_barrier
""")
    for p in range(4):
        a(f"buffer_load_dwordx2 {vr(8 + 2 * p, 2)}, v6, s[48:51], s28 offen offset:{512 * p} {LD}")
    a("""
s_waitcnt vmcnt(0)
v_add_f32 v8, v8, v10
v_add_f32 v9, v9, v11
v_add_f32 v12, v12, v14
v_add_f32 v13, v13, v15
v_add_f32 v8, v8, v12
v_add_f32 v9, v9, v13
v_mov_b32 v10, v8
v_mov_b32 v11, v9
v_permlane32_swap_b32 v10, v8
v_permlane32_swap_b32 v11, v9
v_add_f32 v8, v8, v10
v_add_f32 v9, v9, v11
""")
    Q.row_stats(a, 8, 9, 12, 13, 10)
    a("""
s_barrier
s_mov_b32 m0, 1024
ds_write_b32 v7, v12
ds_write_b32 v7, v13 offset:512
buffer_load_dwordx4 v2, s[20:23], s36 offen lds
s_waitcnt vmcnt(0) lgkmcnt(0)
s_barrier
s_endpgm
""")

    a.label("opq_w8")
    a(f"""
s_bitcmp1_b32 s54, 1
s_cbranch_scc1 opq_w8end
s_and_b32 s28, s2, 1
s_lshl_b32 s28, s28, 3
s_lshr_b32 s29, s2, 5
s_add_u32 s12, s28, s29
s_cmp_ge_u32 s12, 15
s_cbranch_scc1 opq_w8end
s_lshl_b32 s29, s12, 8
s_add_u32 s20, s6, s29
s_addc_u32 s21, s7, 0
s_sub_u32 s22, 2457600, s29
s_mov_b32 s23, 0x20000
v_lshrrev_b32 v3, 4, v0
v_lshrrev_b32 v4, 2, v0
v_xor_b32 v4, v4, v3
v_and_b32 v4, 3, v4
v_and_b32 v5, 3, v0
v_mul_u32_u24 v3, 3840, v3
v_lshl_add_u32 v3, v4, 6, v3
v_lshl_add_u32 v3, v5, 4, v3
s_mov_b32 s30, 0
s_mov_b32 s31, 0
s_barrier
""")
    a.label("opq_w8loop")
    a("s_waitcnt vmcnt(59)")
    for j in range(4):
        a(f"s_add_u32 m0, s30, {1024 * j}")
        a(f"s_add_u32 s34, s31, {4 * 3840 * j}")
        a("buffer_load_dwordx4 v3, s[20:23], s34 offen lds")
    a(f"""
s_add_u32 s30, s30, 4096
s_add_u32 s31, s31, {16 * 3840}
s_cmp_lt_u32 s30, {4096 * NW8}
s_cbranch_scc1 opq_w8loop
s_barrier
s_waitcnt vmcnt(0)
s_barrier
""")
    a.label("opq_w8end")
    a("s_endpgm")

    a.label("opq_idle")
    a("s_waitcnt vmcnt(0)")
    a("s_barrier")
    signal(a, "opq_s3", "s30", 15)
    a("s_branch opq_fin")

    QACC = 100
    BF = [68, 84]
    AF = 28
    AB = 4
    EO = 8
    VL, SC, NM = 24, 25, 26
    STI = 8
    a.label("opq_qcons")
    a("s_waitcnt vmcnt(0)")
    a("s_barrier")
    a.stamp(7)
    signal(a, "opq_s2", "s30", 15)
    a(f"""
v_lshrrev_b32 v{VH}, 5, v0
v_and_b32 v{VM}, 31, v0
v_lshlrev_b32 v{VL}, 4, v0
s_lshl_b32 s40, s11, 2
s_add_u32 s40, s40, s13
s_mul_i32 s28, s40, 40960
s_add_u32 s28, s28, s58
s_add_u32 s16, s8, s28
s_addc_u32 s17, s9, 0
s_mov_b32 s18, 40960
s_mov_b32 s19, 0x20000
s_lshr_b32 s41, s40, 1
s_lshl_b32 s41, s41, 12
s_and_b32 s28, s40, 1
s_lshl_b32 s28, s28, 8
s_add_u32 s41, s41, s28
s_cmp_lt_u32 s12, 10
s_cselect_b64 s[44:45], -1, 0
v_lshrrev_b32 v28, 2, v0
v_and_b32 v28, 3, v28
v_lshl_add_u32 v29, v{VH}, 3, v28
v_lshlrev_b32 v29, 8, v29
v_and_b32 v30, 16, v0
v_lshl_add_u32 v29, v30, 1, v29
v_and_b32 v30, 3, v0
v_lshlrev_b32 v30, 3, v30
v_and_b32 v31, 1, v0
v_lshlrev_b32 v31, 4, v31
v_and_b32 v32, 2, v0
v_lshl_add_u32 v31, v32, 2, v31
v_cndmask_b32 v30, v30, v31, s[44:45]
v_add_u32 v29, v29, v30
v_lshl_add_u32 v{AB}, v28, 6, v29
v_xor_b32 v{AB + 1}, 64, v{AB}
v_xor_b32 v{AB + 2}, 128, v{AB}
v_xor_b32 v{AB + 3}, 192, v{AB}
v_and_b32 v28, 0x13, v0
v_and_b32 v29, 4, v0
v_lshl_add_u32 v28, v29, 1, v28
v_and_b32 v29, 8, v0
v_lshrrev_b32 v29, 1, v29
v_add_u32 v28, v28, v29
v_cndmask_b32 v27, v{VM}, v28, s[44:45]
v_lshlrev_b32 v27, 3, v27
s_lshl_b32 s36, s12, 10
s_add_u32 s36, s36, s56
s_mov_b32 s20, s8
s_mov_b32 s21, s9
s_mov_b32 s22, 0x1000000
s_mov_b32 s23, 0x20000
s_mov_b32 s37, 0
s_mov_b32 s27, 0x20000
""")
    for r in range(64):
        a(f"v_mov_b32 v{QACC + r}, 0")
    a("""
s_cmp_ge_u32 s12, 10
s_cbranch_scc1 opq_v_setup
""")

    def breads(Fb, ks):
        return [f"ds_read_b64_tr_b16 {vr(Fb + 4 * j + 2 * rho, 2)}, v{AB + j} offset:{ks * 4096 + rho * 1024}"
                for j in range(4) for rho in range(2)]

    def mm(typ, j, xa, wb, op="v_mfma_f32_32x32x16_bf16"):
        acc = vr(QACC + 16 * j, 16)
        if typ == "qk":
            a(f"{op} {acc}, {wb}, {xa}, {acc}")
        else:
            a(f"{op} {acc}, {xa}, {wb}, {acc}")

    def qloop(typ):
        wait_flags(a, f"opq_s2{typ}", "s31", 16)
        a("s_barrier")
        a.stamp(8)
        for ks in range(10):
            if ks % 4 == 0:
                a(f"s_mov_b32 s28, {ks * 1024}")
            a(f"buffer_load_dwordx4 {vr(AF + 4 * ks, 4)}, v{VL}, s[16:19], s28 offen offset:{(ks % 4) * 1024} {LD}")
        a("s_mov_b32 s39, 10240")
        for r in breads(BF[0], 0):
            a(r)
        a(f"""
s_mov_b32 s50, -1
s_mov_b32 s51, 0
s_lshl_b32 s29, s13, 7
s_waitcnt vmcnt(10)
v_lshl_add_u32 v164, v{VM}, 2, s29
v_lshl_add_u32 v165, v{VH}, 4, s29
""")
        a.label(f"opq_qloop_{typ}")
        for ks in range(10):
            nxt = breads(BF[(ks + 1) % 2], ks + 1)
            for j in range(4):
                a("s_waitcnt vmcnt(9) lgkmcnt(6)" if j == 0 else "s_waitcnt lgkmcnt(6)")
                mm(typ, j, vr(AF + 4 * ks, 4), vr(BF[ks % 2] + 4 * j, 4))
                a(nxt[2 * j])
                a(nxt[2 * j + 1])
            if ks % 4 == 0:
                a(f"s_add_u32 s28, s39, {ks * 1024}")
            a(f"buffer_load_dwordx4 {vr(AF + 4 * ks, 4)}, v{VL}, s[16:19], s28 offen offset:{(ks % 4) * 1024} {LD}")
        for j in range(4):
            a(f"v_add_u32 v{AB + j}, 40960, v{AB + j}")
        a(f"""
s_add_u32 s39, s39, 10240
s_add_u32 s37, s37, 1
s_bitcmp1_b32 s37, 0
s_cbranch_scc0 opq_qnb_{typ}
s_barrier
""")
        a.label(f"opq_qnb_{typ}")
        a(f"""
s_cmp_lt_u32 s37, 4
s_cbranch_scc1 opq_qloop_{typ}
""")
        a.stamp(9)
        a("s_waitcnt vmcnt(0) lgkmcnt(0)")
        a(f"ds_read_b32 v{NM}, v164 offset:512")
        for j in range(4):
            a(f"ds_read_b64 {vr(40 + 2 * j, 2)}, v27 offset:{1024 + 256 * j}")
        if typ == "qk":
            a(f"ds_read_b32 v{SC}, v164")
        else:
            for g in range(4):
                a(f"ds_read_b128 {vr(48 + 4 * g, 4)}, v165 offset:{32 * g}")
        a(f"s_waitcnt lgkmcnt({5 if typ == 'qk' else 8})")
        Q.x_operand(a, NM, 36, 34)
        a(f"s_waitcnt lgkmcnt({0 if typ == 'qk' else 4})")
        for j in range(4):
            mm(typ, j, vr(36, 2), vr(40 + 2 * j, 2), "v_mfma_f32_32x32x8_bf16")

    a(f"""
s_mov_b32 s42, 81920
s_mov_b32 s43, 1280
s_mov_b32 s30, 1024
s_mov_b32 s28, {WS_QI}
s_mov_b32 s26, {QI_BYTES}
s_cmp_ge_u32 s12, 5
s_cmov_b32 s42, 163840
s_cmov_b32 s43, 2560
s_cmov_b32 s30, 2304
s_cmov_b32 s28, {WS_KV}
s_cmov_b32 s26, {KV_BYTES}
s_cselect_b32 s29, 5, 0
s_add_u32 s28, s28, s58
s_add_u32 s24, s8, s28
s_addc_u32 s25, s9, 0
s_sub_u32 s29, s12, s29
s_mul_i32 s40, s40, s43
s_add_u32 s43, s40, s42
s_lshl_b32 s29, s29, 4
v_lshlrev_b32 v30, 4, v{VM}
v_lshlrev_b32 v31, 3, v{VM}
v_add_u32 v31, s30, v31
v_mov_b32 v32, 0x7fffff00
s_mov_b32 s14, 0
""")
    for n in range(8):
        e = EO + 2 * n
        a(f"""
s_add_u32 s30, s29, {2 * n}
v_add_u32 v28, s30, v{VH}
v_mul_u32_u24 v29, 205, v28
v_lshrrev_b32 v29, 10, v29
v_mul_u32_u24 v33, 5, v29
v_sub_u32 v28, v28, v33
v_cmp_eq_u32 s[46:47], 2, v28
v_cmp_lt_u32 s[44:45], 2, v28
v_lshlrev_b32 v29, 1, v29
v_mul_lo_u32 v29, v29, s42
v_add_u32 v34, v29, v31
v_cndmask_b32 v{e + 1}, v32, v34, s[46:47]
v_mov_b32 v33, 0
v_mov_b32 v34, s42
v_cndmask_b32 v33, v33, v34, s[44:45]
v_add_u32 v29, v29, v33
v_subrev_u32 v33, 3, v28
v_cndmask_b32 v28, v28, v33, s[44:45]
v_lshl_add_u32 v28, v28, 9, v30
v_add_u32 v28, v28, v29
v_cndmask_b32 v{e}, v28, v32, s[46:47]
s_cmp_lg_u64 s[46:47], 0
s_cselect_b32 s15, {1 << n}, 0
s_or_b32 s14, s14, s15
""")
    qloop("qk")
    TT = [48, 68]
    for n in range(8):
        t = TT[n % 2]
        e = EO + 2 * n
        for r in range(8):
            a(f"v_mul_f32 v{t + r}, v{SC}, v{QACC + 8 * n + r}")
        for r in range(4):
            a(f"v_cvt_pk_bf16_f32 v{t + 8 + r}, v{t + 2 * r}, v{t + 2 * r + 1}")
        a(f"buffer_store_dwordx4 {vr(t + 8, 4)}, v{e}, s[24:27], s40 offen {WT}")
        a(f"s_bitcmp1_b32 s14, {n}")
        a(f"s_cbranch_scc0 opq_ns{n}")
        a(f"buffer_store_dwordx2 {vr(t + 8, 2)}, v{e + 1}, s[24:27], s40 offen {WT}")
        a(f"buffer_store_dwordx2 {vr(t + 10, 2)}, v{e + 1}, s[24:27], s43 offen {WT}")
        a.label(f"opq_ns{n}")
    a.label("opq_fin")
    a.stamp(10)
    a.dump(0, "s13")
    a("s_endpgm")

    a.label("opq_v_setup")
    a(f"""
s_add_u32 s28, s58, {WS_KV}
s_add_u32 s24, s8, s28
s_addc_u32 s25, s9, 0
s_mov_b32 s26, {KV_BYTES}
s_mul_i32 s40, s40, 2560
s_sub_u32 s29, s12, 10
s_lshl_b32 s29, s29, 7
s_mov_b32 s42, 163840
v_mul_u32_u24 v30, 320, v{VH}
v_add_u32 v30, 1024, v30
""")
    for j in range(4):
        a(f"""
s_add_u32 s28, s29, {32 * j}
v_add_u32 v28, s28, v{VM}
v_mul_u32_u24 v29, 3277, v28
v_lshrrev_b32 v29, 16, v29
v_mul_u32_u24 v33, 20, v29
v_sub_u32 v28, v28, v33
v_lshl_add_u32 v28, v28, 4, v30
v_mul_lo_u32 v29, v29, s42
v_add_u32 v{EO + j}, v29, v28
""")
    qloop("v")
    a("s_waitcnt lgkmcnt(0)")
    TV = [68, 84]
    for n in range(8):
        t = TV[n % 2]
        j, gp = n // 2, n % 2
        for r in range(8):
            a(f"v_mul_f32 v{t + r}, v{48 + 8 * gp + r}, v{QACC + 8 * n + r}")
        for r in range(4):
            a(f"v_cvt_pk_bf16_f32 v{t + 8 + r}, v{t + 2 * r}, v{t + 2 * r + 1}")
        a(f"buffer_store_dwordx4 {vr(t + 8, 4)}, v{EO + j}, s[24:27], s40 offen offset:{640 * gp} {WT}")
    a("s_branch opq_fin")
```

```python
import struct
from asmlib import Asm

WS_X = 0x0
WS_OT = 0x280000
WS_QI = 0x500000
WS_KV = 0x780000
WS_ST = 0xC80000
WS_CS = [0xCA0000, 0xCA4000]
WS_WOT = [0xCB0000, 0xD80000]
OPT = {}
LSTRIDE = 0x1000000


def lofs(layer):
    return layer * LSTRIDE if OPT.get('fresh', 1) else 0

QI_BYTES = 32 * 81920
KV_BYTES = 32 * 163840
QSCALE = (20 ** -0.5) * 1.4426950408889634


def f32(x):
    return "0x%08x" % struct.unpack("<I", struct.pack("<f", x))[0]


def vr(base, n):
    return f"v[{base}:{base + n - 1}]"


QKV_VGPRS = 192
ACC = 64
F = [128, 144]
AA = 8
AB = 16
ST = 18
EO = 24
VH, VM, VF = 2, 3, 62
SC = 56
XO = 58
WO = 160


def gen_qkv_stub(a, layer):
    name = f"qkv{layer}_kernel"
    a.raw(f".globl {name}")
    a.raw(".p2align 8")
    a.raw(f".type {name},@function")
    a.label(name)
    a(f"s_load_dwordx2 s[4:5], s[0:1], {0 if layer == 0 else 64}")
    a(f"s_load_dwordx2 s[6:7], s[0:1], {8 if layer % 2 == 0 else 32}")
    a("s_load_dwordx2 s[8:9], s[0:1], 64")
    a(f"s_mov_b32 s10, {WS_CS[layer % 2]}")
    a(f"s_mov_b32 s45, {lofs(layer)}")
    if layer != 0:
        a("s_branch qkvf_body")


def split3(a, src, d0, d1, t0, t1):
    a(f"""
v_cvt_pk_bf16_f32 v{t0}, v{src}, v{src}
v_and_b32 v{t0}, 0xffff0000, v{t0}
v_sub_f32 v{t1}, v{src}, v{t0}
v_cvt_pk_bf16_f32 v{d0}, v{t0}, v{t1}
v_and_b32 v{t0}, 0xffff0000, v{d0}
v_sub_f32 v{t1}, v{t1}, v{t0}
v_mov_b32 v{t0}, 0
v_cvt_pk_bf16_f32 v{d1}, v{t1}, v{t0}
""")


def row_stats(a, vs, vq, dst_scale, dst_negmean, t):
    a(f"""
v_mul_f32 v{vs}, {f32(1.0 / 640)}, v{vs}
v_mul_f32 v{vq}, {f32(1.0 / 640)}, v{vq}
v_fma_f32 v{vq}, -v{vs}, v{vs}, v{vq}
v_max_f32 v{vq}, 0, v{vq}
v_cvt_pk_bf16_f32 v{t}, v{vs}, v{vq}
v_and_b32 v{vq}, 0xffff0000, v{t}
v_lshlrev_b32 v{vs}, 16, v{t}
v_add_f32 v{vq}, {f32(1e-5)}, v{vq}
v_cvt_pk_bf16_f32 v{vq}, v{vq}, v{vq}
v_and_b32 v{vq}, 0xffff0000, v{vq}
v_sqrt_f32 v{vq}, v{vq}
v_cvt_pk_bf16_f32 v{vq}, v{vq}, v{vq}
v_and_b32 v{vq}, 0xffff0000, v{vq}
v_rcp_f32 v{vq}, v{vq}
v_xor_b32 v{dst_negmean}, 0x80000000, v{vs}
v_mul_f32 v{dst_scale}, s38, v{vq}
""")


def x_operand(a, negmean, dst, t):
    a(f"""
v_mov_b32 v{t}, 0
v_cndmask_b32 v{t}, v{t}, v{negmean}, s[50:51]
v_lshrrev_b32 v{dst + 1}, 16, v{t}
v_or_b32 v{dst}, v{dst + 1}, v{t}
""")


def rank1(a, typ, first):
    for i in range(2):
        for j in range(2):
            acc = vr(ACC + (2 * i + j) * 16, 16)
            c = "0" if first else acc
            xa, wb = vr(XO + 2 * i, 2), vr(WO + 2 * j, 2)
            if typ == "qk":
                a(f"v_mfma_f32_32x32x8_bf16 {acc}, {wb}, {xa}, {c}")
            else:
                a(f"v_mfma_f32_32x32x8_bf16 {acc}, {xa}, {wb}, {c}")


def gen_touch(a):
    if OPT.get("touch", 2) == 2:
        a(f"""
s_mov_b32 s16, s4
s_mov_b32 s17, s5
s_mov_b32 s18, 2621440
s_mov_b32 s20, s6
s_mov_b32 s21, s7
s_mov_b32 s22, 2457600
s_mul_i32 s28, s11, 15
s_add_u32 s28, s28, s12
s_lshl_b32 s28, s28, 2
s_add_u32 s28, s28, s13
s_mul_i32 s29, s28, 2816
s_mul_i32 s28, s28, 2560
v_lshlrev_b32 v4, 7, v0
s_mov_b64 exec, 0x3fffff
buffer_load_dword v50, v4, s[16:19], s29 offen
s_mov_b64 exec, 0xfffff
buffer_load_dword v52, v4, s[20:23], s28 offen
s_mov_b64 exec, -1
""")


def gen_qkv_body(a, slow):
    P = "qkvs" if slow else "qkvf"
    WT = OPT.get("wt", "sc0 sc1")
    if not slow:
        a.raw(".p2align 8")
    a.label(f"{P}_body")
    a.stamp(0, real=True)
    a.stamp(1)
    a(f"""
s_cmp_ge_u32 s2, 256
s_cbranch_scc1 {P}_end
s_and_b32 s28, s2, 7
s_lshr_b32 s29, s2, 3
s_lshr_b32 s11, s28, 1
s_lshl_b32 s11, s11, 2
s_and_b32 s30, s29, 3
s_add_u32 s11, s11, s30
s_and_b32 s12, s28, 1
s_lshl_b32 s12, s12, 3
s_lshr_b32 s30, s29, 2
s_add_u32 s12, s12, s30
s_cmp_ge_u32 s12, 15
s_cbranch_scc1 {P + '_aux' if slow else P + '_end'}
v_lshrrev_b32 v1, 6, v0
v_and_b32 v0, 63, v0
v_readfirstlane_b32 s13, v1
s_mul_i32 s28, s11, 163840
s_add_u32 s28, s28, s45
s_lshl_b32 s29, s12, 8
s_mov_b32 s18, 163840
s_mov_b32 s19, 0x20000
s_sub_u32 s22, 2457600, s29
s_mov_b32 s23, 0x20000
s_cmp_ge_u32 s13, 4
s_cbranch_scc0 {P}_cons
""")
    a("""
s_sub_u32 s13, s13, 4
v_lshrrev_b32 v1, 3, v0
s_lshl_b32 s30, s13, 3
v_add_u32 v1, s30, v1
v_lshrrev_b32 v2, 1, v1
v_xor_b32 v2, v2, v0
v_and_b32 v2, 7, v2
v_mul_u32_u24 v1, 1280, v1
v_lshl_add_u32 v1, v2, 4, v1
v_lshrrev_b32 v3, 4, v0
v_lshrrev_b32 v4, 2, v0
v_xor_b32 v4, v4, v3
v_and_b32 v4, 3, v4
v_and_b32 v5, 3, v0
s_lshl_b32 s30, s13, 2
v_add_u32 v3, s30, v3
v_mul_u32_u24 v2, 3840, v3
v_lshl_add_u32 v2, v4, 6, v2
v_lshl_add_u32 v2, v5, 4, v2
s_lshl_b32 s30, s13, 10
s_mov_b32 s31, 0
s_mov_b32 s32, 0
s_mov_b32 s33, 0
s_waitcnt lgkmcnt(0)
s_add_u32 s16, s4, s28
s_addc_u32 s17, s5, 0
s_add_u32 s20, s6, s29
s_addc_u32 s21, s7, 0
""")
    a.label(f"{P}_ld_loop")
    a(f"""
s_cmp_lt_u32 s33, 5
s_cbranch_scc0 {P}_ld_b
s_cmp_eq_u32 s33, 3
s_cbranch_scc0 {P}_ld_issue
""")
    a.stamp(2)
    a("s_waitcnt vmcnt(16)")
    a.stamp(3)
    a("s_barrier")
    a(f"s_branch {P}_ld_issue")
    a.label(f"{P}_ld_b")
    a("""
s_waitcnt vmcnt(24)
s_barrier
""")
    a.label(f"{P}_ld_issue")
    for j in range(4):
        a(f"s_add_u32 m0, s30, {j * 4096}")
        a(f"s_add_u32 s34, s31, {j * 40960}")
        a("buffer_load_dwordx4 v1, s[16:19], s34 offen lds")
        a(f"s_add_u32 m0, s30, {16384 + j * 4096}")
        a(f"s_add_u32 s35, s32, {j * 16 * 3840}")
        a("buffer_load_dwordx4 v2, s[20:23], s35 offen lds")
    a(f"""
s_add_u32 s30, s30, 32768
s_add_u32 s31, s31, 128
s_add_u32 s32, s32, {64 * 3840}
s_add_u32 s33, s33, 1
s_cmp_eq_u32 s33, 5
s_cselect_b32 s34, 163840, 0
s_sub_u32 s30, s30, s34
s_cmp_lt_u32 s33, 10
s_cbranch_scc1 {P}_ld_loop
""")
    a.stamp(4)
    if slow:
        a(f"""
s_load_dwordx2 s[56:57], s[0:1], 16
s_load_dwordx2 s[60:61], s[0:1], 40
s_mul_i32 s46, s11, 15
s_add_u32 s46, s46, s12
s_lshl_b32 s46, s46, 8
s_lshl_b32 s47, s13, 6
s_add_u32 s46, s46, s47
v_add_u32 v6, s46, v0
v_lshlrev_b32 v7, 4, v6
s_mov_b32 s47, 52429
v_mul_lo_u32 v3, v6, s47
v_lshrrev_b32 v3, 22, v3
v_mul_u32_u24 v4, 80, v3
v_sub_u32 v4, v6, v4
v_mul_u32_u24 v5, 6554, v4
v_lshrrev_b32 v5, 16, v5
v_mul_u32_u24 v16, 10, v5
v_sub_u32 v4, v4, v16
v_mul_u32_u24 v16, 3277, v3
v_lshrrev_b32 v16, 16, v16
v_mul_u32_u24 v17, 20, v16
v_sub_u32 v17, v3, v17
v_lshrrev_b32 v18, 3, v17
v_lshl_add_u32 v18, v16, 1, v18
v_lshrrev_b32 v19, 2, v18
v_lshlrev_b32 v19, 5, v19
v_and_b32 v18, 3, v18
v_lshl_add_u32 v19, v18, 2, v19
v_and_b32 v18, 4, v17
v_lshl_add_u32 v19, v18, 2, v19
v_lshlrev_b32 v18, 2, v16
v_add_u32 v18, 512, v18
v_cmp_le_u32 s[48:49], 16, v17
v_and_b32 v17, 3, v17
v_cndmask_b32 v3, v19, v18, s[48:49]
v_add_u32 v3, v3, v17
v_mul_u32_u24 v3, 160, v3
v_lshl_add_u32 v3, v4, 4, v3
s_mov_b32 s47, 102400
v_mul_lo_u32 v5, v5, s47
v_add_u32 v3, v3, v5
s_mov_b32 s47, 51200
v_cmp_gt_u32 s[48:49], s47, v6
v_mov_b32 v4, 0x7fffff00
v_cndmask_b32 v3, v4, v3, s[48:49]
s_mov_b32 s58, 819200
s_mov_b32 s59, 0x20000
s_mov_b32 s62, 819200
s_mov_b32 s63, 0x20000
s_add_u32 s24, s8, {WS_WOT[0]}
s_addc_u32 s25, s9, 0
s_mov_b32 s26, {WS_WOT[1] - WS_WOT[0] + 819200}
s_mov_b32 s27, 0x20000
s_mov_b32 s47, {WS_WOT[1] - WS_WOT[0]}
s_load_dwordx2 s[40:41], s[0:1], 32
v_mul_u32_u24 v6, 3840, v0
s_lshl_b32 s43, s12, 8
s_lshl_b32 s42, s11, 4
s_add_u32 s46, s42, s43
s_mov_b32 s42, 2457600
s_mov_b32 s43, 0x20000
s_waitcnt lgkmcnt(0)
""")
    a("buffer_load_dwordx4 v[8:11], v7, s[56:59], 0 offen")
    a("buffer_load_dwordx4 v[12:15], v7, s[60:63], 0 offen")
    a(f"s_cmp_lg_u32 s13, 0")
    a(f"s_cbranch_scc1 {P}_ld_tail")
    for n in range(10):
        a(f"s_add_u32 s34, s46, {n * 64 * 3840}")
        a(f"buffer_load_dwordx4 {vr(32 + 4 * n, 4)}, v6, s[40:43], s34 offen")
    a("""
s_waitcnt vmcnt(36)
s_barrier
s_waitcnt vmcnt(28)
s_barrier
s_waitcnt vmcnt(20)
s_barrier
s_waitcnt vmcnt(12)
s_barrier
s_waitcnt vmcnt(10)
buffer_store_dwordx4 v[8:11], v3, s[24:27], 0 offen
buffer_store_dwordx4 v[12:15], v3, s[24:27], s47 offen
s_barrier
s_waitcnt vmcnt(2)
""")
    for r in range(4):
        a(f"v_lshlrev_b32 v{20 + 2 * r}, 16, v{32 + r}")
        a(f"v_and_b32 v{21 + 2 * r}, 0xffff0000, v{32 + r}")
    for n in range(1, 10):
        for r in range(4):
            a(f"v_lshlrev_b32 v4, 16, v{32 + 4 * n + r}")
            a(f"v_and_b32 v5, 0xffff0000, v{32 + 4 * n + r}")
            a(f"v_add_f32 v{20 + 2 * r}, v{20 + 2 * r}, v4")
            a(f"v_add_f32 v{21 + 2 * r}, v{21 + 2 * r}, v5")
    for dpp in ("quad_perm:[1,0,3,2]", "quad_perm:[2,3,0,1]", "row_half_mirror", "row_mirror"):
        for r in range(8):
            a(f"v_add_f32_dpp v{20 + r}, v{20 + r}, v{20 + r} {dpp} row_mask:0xf bank_mask:0xf")
    for r in range(8):
        a(f"v_mov_b32 v{32 + r}, v{20 + r}")
    for r in range(8):
        a(f"v_permlane16_swap_b32 v{32 + r}, v{20 + r}")
    for r in range(8):
        a(f"v_add_f32 v{20 + r}, v{20 + r}, v{32 + r}")
    for r in range(8):
        a(f"v_mov_b32 v{32 + r}, v{20 + r}")
    for r in range(8):
        a(f"v_permlane32_swap_b32 v{32 + r}, v{20 + r}")
    for r in range(8):
        a(f"v_add_f32 v{20 + r}, v{20 + r}, v{32 + r}")
    for r in range(1, 8):
        a(f"v_cmp_eq_u32 s[48:49], {r}, v0")
        a(f"v_cndmask_b32 v20, v20, v{20 + r}, s[48:49]")
    split3(a, 20, 8, 9, 10, 11)
    a(f"""
s_add_u32 s52, s8, {WS_CS[1]}
s_addc_u32 s53, s9, 0
s_mov_b32 s54, 15360
s_mov_b32 s55, 0x20000
s_lshl_b32 s29, s46, 2
v_lshlrev_b32 v4, 3, v0
s_mov_b64 exec, 0xff
buffer_store_dwordx2 v[8:9], v4, s[52:55], s29 offen
s_endpgm
""")
    a.label(f"{P}_ld_tail")
    a("""
s_waitcnt vmcnt(26)
s_barrier
s_waitcnt vmcnt(18)
s_barrier
s_waitcnt vmcnt(10)
s_barrier
s_waitcnt vmcnt(2)
""")
    a.stamp(5)
    a("s_barrier")
    a.stamp(6)
    a("""
s_waitcnt vmcnt(0)
buffer_store_dwordx4 v[8:11], v3, s[24:27], 0 offen
buffer_store_dwordx4 v[12:15], v3, s[24:27], s47 offen
s_barrier
""")
    if a.prof:
        a("s_add_u32 s13, s13, 4")
    a.dump(0, "s13")
    a.label(f"{P}_end")
    a("s_endpgm")

    a.label(f"{P}_cons")
    a(f"""
s_load_dwordx2 s[78:79], s[0:1], 32
s_load_dwordx2 s[80:81], s[0:1], 16
s_load_dwordx2 s[82:83], s[0:1], 40
s_lshr_b32 s14, s13, 1
s_and_b32 s15, s13, 1
v_lshrrev_b32 v{VH}, 5, v0
v_and_b32 v{VM}, 31, v0
s_lshl_b32 s40, s11, 2
s_lshl_b32 s28, s14, 1
s_add_u32 s40, s40, s28
s_add_u32 s40, s40, s15
s_xor_b32 s41, s40, 1
s_mov_b32 s50, -1
s_mov_b32 s51, 0
s_mov_b32 s38, 1.0
s_cmp_lt_u32 s12, 5
s_cmov_b32 s38, {f32(QSCALE)}
s_mov_b32 s55, 0x20000
s_mov_b32 s54, 0x4000000
s_cmp_lt_u32 s12, 10
s_cselect_b64 s[62:63], -1, 0
v_and_b32 v4, 0x13, v0
v_and_b32 v5, 4, v0
v_lshl_add_u32 v4, v5, 1, v4
v_and_b32 v5, 8, v0
v_lshrrev_b32 v5, 1, v5
v_add_u32 v4, v4, v5
v_cndmask_b32 v{VF}, v{VM}, v4, s[62:63]
s_waitcnt lgkmcnt(0)
s_add_u32 s52, s8, {WS_ST}
s_addc_u32 s53, s9, 0
""")
    if not OPT.get("touch_late", 0):
        gen_touch(a)
    if OPT.get("codepf", 1):
        a(f"""
s_getpc_b64 s[60:61]
s_and_b32 s60, s60, 0xffffff00
s_mov_b32 s62, code_end - {P}_cons
s_mov_b32 s63, 0x20000
s_lshr_b32 s28, s2, 3
s_and_b32 s28, s28, 7
s_lshl_b32 s28, s28, 2
s_add_u32 s28, s28, s13
s_lshl_b32 s28, s28, 10
v_lshlrev_b32 v4, 7, v0
s_mov_b64 exec, 0xff
buffer_load_dword v53, v4, s[60:63], s28 offen
s_mov_b64 exec, -1
s_cmp_lt_u32 s12, 10
s_cselect_b64 s[62:63], -1, 0
""")
    if OPT.get("touch", 2) == 1:
        a(f"""
s_mul_i32 s28, s11, 163840
s_add_u32 s16, s4, s28
s_addc_u32 s17, s5, 0
s_lshl_b32 s29, s12, 8
s_add_u32 s20, s6, s29
s_addc_u32 s21, s7, 0
s_and_b32 s28, s12, 7
s_mul_i32 s28, s28, 24576
s_mul_i32 s29, s13, 6144
s_add_u32 s28, s28, s29
v_lshlrev_b32 v4, 7, v0
s_mov_b32 exec_hi, 0xffff
buffer_load_dword v50, v4, s[16:19], s28 offen
s_mov_b32 exec_hi, -1
v_lshrrev_b32 v4, 1, v0
v_mul_u32_u24 v4, 61440, v4
v_and_b32 v5, 1, v0
v_lshl_add_u32 v4, v5, 7, v4
s_and_b32 s28, s11, 3
s_lshl_b32 s28, s28, 2
s_add_u32 s28, s28, s13
s_mul_i32 s28, s28, 3840
buffer_load_dword v52, v4, s[20:23], s28 offen
s_add_u32 s28, s28, {32 * 61440}
buffer_load_dword v53, v4, s[20:23], s28 offen
""")
    if not slow:
        a(f"""
v_lshlrev_b32 v4, 6, v{VM}
v_lshl_add_u32 v4, v{VH}, 5, v4
s_lshl_b32 s28, s40, 11
s_lshl_b32 s29, s41, 11
s_add_u32 s28, s28, s45
s_add_u32 s29, s29, s45
buffer_load_dwordx4 v[32:35], v4, s[52:55], s28 offen
buffer_load_dwordx4 v[36:39], v4, s[52:55], s28 offen offset:16
buffer_load_dwordx4 v[40:43], v4, s[52:55], s29 offen
buffer_load_dwordx4 v[44:47], v4, s[52:55], s29 offen offset:16
v_lshlrev_b32 v5, 3, v{VF}
s_lshl_b32 s28, s12, 10
s_lshl_b32 s29, s15, 9
s_add_u32 s28, s28, s29
s_lshl_b32 s29, s14, 8
s_add_u32 s28, s28, s29
s_sub_u32 s29, s10, {WS_ST}
s_add_u32 s28, s28, s29
s_xor_b32 s29, s28, 256
buffer_load_dwordx2 {vr(WO, 2)}, v5, s[52:55], s28 offen
buffer_load_dwordx2 {vr(WO + 2, 2)}, v5, s[52:55], s29 offen
""")
    a(f"""
v_lshrrev_b32 v4, 1, v{VM}
v_xor_b32 v4, v4, v{VH}
v_and_b32 v4, 7, v4
v_lshlrev_b32 v4, 4, v4
v_lshl_add_u32 v4, v{VM}, 7, v4
s_lshl_b32 s28, s14, 13
s_lshl_b32 s29, s15, 12
s_add_u32 s30, s28, s29
s_xor_b32 s31, s30, 4096
v_add_u32 v{AA}, s30, v4
v_add_u32 v{AA + 4}, s31, v4
""")
    for i in range(2):
        for ks in range(1, 4):
            a(f"v_xor_b32 v{AA + 4 * i + ks}, {ks << 5}, v{AA + 4 * i}")
    a(f"""
v_lshrrev_b32 v4, 2, v0
v_and_b32 v4, 3, v4
v_lshl_add_u32 v5, v{VH}, 3, v4
v_lshlrev_b32 v5, 8, v5
v_and_b32 v6, 16, v0
v_lshl_add_u32 v5, v6, 1, v5
v_and_b32 v6, 3, v0
v_lshlrev_b32 v6, 3, v6
v_and_b32 v7, 1, v0
v_lshlrev_b32 v7, 4, v7
v_and_b32 v48, 2, v0
v_lshl_add_u32 v7, v48, 2, v7
v_cndmask_b32 v6, v6, v7, s[62:63]
v_add_u32 v5, v5, v6
s_lshl_b32 s28, s15, 1
s_add_u32 s28, s28, s14
v_xor_b32 v4, s28, v4
v_lshl_add_u32 v5, v4, 6, v5
v_add_u32 v{AB}, 16384, v5
v_xor_b32 v{AB + 1}, 64, v{AB}
s_mov_b32 s36, 0x3f803f80
s_mov_b32 s27, 0x20000
s_mov_b32 s37, 0
""")
    if slow:
        for r in range(6):
            a(f"v_mov_b32 v{ST + r}, 0")
        for r in range(64):
            a(f"v_mov_b32 v{ACC + r}, 0")
    a(f"""
s_cmp_ge_u32 s12, 10
s_cbranch_scc1 {P}_v_setup
""")

    def fast_stats():
        a("s_waitcnt vmcnt(2)")
        for i in range(2):
            b = 32 + 8 * i
            a(f"""
v_add_f32 v{b}, v{b}, v{b + 2}
v_add_f32 v{b + 1}, v{b + 1}, v{b + 3}
v_add_f32 v{b + 4}, v{b + 4}, v{b + 6}
v_add_f32 v{b + 5}, v{b + 5}, v{b + 7}
v_add_f32 v{b}, v{b}, v{b + 4}
v_add_f32 v{b + 1}, v{b + 1}, v{b + 5}
v_mov_b32 v{b + 2}, v{b}
v_mov_b32 v{b + 3}, v{b + 1}
v_permlane32_swap_b32 v{b + 2}, v{b}
v_permlane32_swap_b32 v{b + 3}, v{b + 1}
v_add_f32 v{b}, v{b}, v{b + 2}
v_add_f32 v{b + 1}, v{b + 1}, v{b + 3}
""")
            row_stats(a, b, b + 1, SC + i, b + 2, b + 3)
            x_operand(a, b + 2, XO + 2 * i, b + 3)
        a("s_waitcnt vmcnt(0)")

    def slow_stats(typ):
        a(f"""
v_add_f32 v4, v{ST}, v{ST + 1}
v_add_f32 v5, v{ST + 2}, v{ST + 3}
v_add_f32 v6, v{ST + 4}, v{ST + 5}
v_mov_b32 v7, v4
v_mov_b32 v8, v5
v_mov_b32 v9, v6
v_permlane32_swap_b32 v7, v4
v_permlane32_swap_b32 v8, v5
v_permlane32_swap_b32 v9, v6
v_add_f32 v4, v4, v7
v_add_f32 v5, v5, v8
v_add_f32 v6, v6, v9
""")
        row_stats(a, 4, 5, SC, 8, 7)
        split3(a, 6, WO, WO + 1, 9, 10)
        a(f"""
s_lshl_b32 s28, s14, 8
s_lshl_b32 s29, s15, 7
s_add_u32 s28, s28, s29
v_lshl_add_u32 v7, v{VM}, 2, s28
ds_write_b32 v7, v{SC} offset:4096
ds_write_b32 v7, v8 offset:4608
s_lshl_b32 s28, s15, 9
s_lshl_b32 s29, s14, 8
s_add_u32 s28, s28, s29
v_lshl_add_u32 v9, v{VF}, 3, s28
ds_write_b64 v9, {vr(WO, 2)} offset:5120
s_lshl_b32 s29, s12, 10
s_add_u32 s29, s29, {WS_CS[0] - WS_ST}
s_cmp_lg_u32 s11, 0
s_cbranch_scc1 {P}_nocs_{typ}
buffer_store_dwordx2 {vr(WO, 2)}, v9, s[52:55], s29 offen
""")
        a.label(f"{P}_nocs_{typ}")
        a(f"""
s_waitcnt lgkmcnt(0)
s_barrier
v_xor_b32 v7, 128, v7
v_xor_b32 v9, 256, v9
ds_read_b32 v{SC + 1}, v7 offset:4096
ds_read_b32 v10, v7 offset:4608
ds_read_b64 {vr(WO + 2, 2)}, v9 offset:5120
""")
        x_operand(a, 8, XO, 11)
        a("s_waitcnt lgkmcnt(0)")
        x_operand(a, 10, XO + 2, 11)
        rank1(a, typ, False)

    a(f"""
s_mov_b32 s42, 81920
s_mov_b32 s43, 1280
s_mov_b32 s44, 1024
s_mov_b32 s28, {WS_QI}
s_mov_b32 s26, {QI_BYTES}
s_cmp_ge_u32 s12, 5
s_cmov_b32 s42, 163840
s_cmov_b32 s43, 2560
s_cmov_b32 s44, 2304
s_cmov_b32 s28, {WS_KV}
s_cmov_b32 s26, {KV_BYTES}
s_cselect_b32 s29, 5, 0
s_add_u32 s28, s28, s45
s_add_u32 s24, s8, s28
s_addc_u32 s25, s9, 0
s_sub_u32 s29, s12, s29
s_mul_i32 s40, s40, s43
s_mul_i32 s41, s41, s43
s_lshl_b32 s29, s29, 4
s_lshl_b32 s28, s15, 3
s_add_u32 s29, s29, s28
v_lshlrev_b32 v6, 4, v{VM}
v_lshlrev_b32 v7, 3, v{VM}
v_add_u32 v7, s44, v7
v_mov_b32 v51, 0x7fffff00
""")
    for j in range(2):
        a(f"s_xor_b32 s28, s14, {j}")
        a("s_lshl_b32 s28, s28, 2")
        a("s_add_u32 s28, s28, s29")
        for gp in range(2):
            e = EO + 2 * (2 * j + gp)
            sm = 56 + 2 * ((2 * j + gp) % 2) if False else None
            mask = [f"s[{x}:{x + 1}]" for x in (46, 48, 56, 58)][2 * j + gp]
            a(f"""
s_add_u32 s30, s28, {2 * gp}
v_add_u32 v4, s30, v{VH}
v_mul_u32_u24 v5, 205, v4
v_lshrrev_b32 v5, 10, v5
v_mul_u32_u24 v48, 5, v5
v_sub_u32 v4, v4, v48
v_cmp_eq_u32 {mask}, 2, v4
v_cmp_lt_u32 s[60:61], 2, v4
v_lshlrev_b32 v5, 1, v5
v_mul_lo_u32 v5, v5, s42
v_add_u32 v49, v5, v7
v_cndmask_b32 v{e + 1}, v51, v49, {mask}
v_mov_b32 v48, 0
v_mov_b32 v49, s42
v_cndmask_b32 v48, v48, v49, s[60:61]
v_add_u32 v5, v5, v48
v_subrev_u32 v48, 3, v4
v_cndmask_b32 v4, v4, v48, s[60:61]
v_lshl_add_u32 v4, v4, 9, v6
v_add_u32 v4, v4, v5
v_cndmask_b32 v{e}, v4, v51, {mask}
""")
    if not slow:
        fast_stats()
        rank1(a, "qk", True)
    gen_mainloop(a, P, "qk", slow, None)
    if slow:
        slow_stats("qk")
    a.stamp(5)
    T = 164
    n = 0
    a("s_add_u32 s28, s40, s42")
    a("s_add_u32 s29, s41, s42")
    for i in range(2):
        for j in range(2):
            for gp in range(2):
                t = T + 12 * (n % 2)
                n += 1
                e = EO + 2 * (2 * j + gp)
                mask = [f"s[{x}:{x + 1}]" for x in (46, 48, 56, 58)][2 * j + gp]
                for r in range(8):
                    a(f"v_mul_f32 v{t + r}, v{SC + i}, v{ACC + (2 * i + j) * 16 + 8 * gp + r}")
                for r in range(4):
                    a(f"v_cvt_pk_bf16_f32 v{t + 8 + r}, v{t + 2 * r}, v{t + 2 * r + 1}")
                a(f"buffer_store_dwordx4 {vr(t + 8, 4)}, v{e}, s[24:27], s{40 + i} offen {WT}")
                a(f"s_cmp_eq_u64 {mask}, 0")
                a(f"s_cbranch_scc1 {P}_ns{n}")
                a(f"buffer_store_dwordx2 {vr(t + 8, 2)}, v{e + 1}, s[24:27], s{40 + i} offen {WT}")
                a(f"buffer_store_dwordx2 {vr(t + 10, 2)}, v{e + 1}, s[24:27], s{28 + i} offen {WT}")
                a.label(f"{P}_ns{n}")
    a.stamp(6)
    if a.prof == 1:
        a("s_waitcnt vmcnt(0)")
    a.stamp(7)
    a.dump(0, "s13")
    a("s_endpgm")

    a.label(f"{P}_v_setup")
    a(f"""
s_add_u32 s28, s45, {WS_KV}
s_add_u32 s24, s8, s28
s_addc_u32 s25, s9, 0
s_mov_b32 s26, {KV_BYTES}
s_mul_i32 s40, s40, 2560
s_mul_i32 s41, s41, 2560
s_sub_u32 s29, s12, 10
s_lshl_b32 s29, s29, 7
s_lshl_b32 s28, s15, 6
s_add_u32 s29, s29, s28
s_mov_b32 s42, 163840
v_mul_u32_u24 v6, 320, v{VH}
v_add_u32 v6, 1024, v6
s_lshl_b32 s28, s13, 8
v_lshl_add_u32 v{EO + 2}, v{VM}, 2, s28
v_lshl_add_u32 v{EO + 3}, v{VH}, 4, s28
""")
    for j in range(2):
        a(f"""
s_xor_b32 s28, s14, {j}
s_lshl_b32 s28, s28, 5
s_add_u32 s28, s28, s29
v_add_u32 v4, s28, v{VM}
v_mul_u32_u24 v5, 3277, v4
v_lshrrev_b32 v5, 16, v5
v_mul_u32_u24 v48, 20, v5
v_sub_u32 v4, v4, v48
v_lshl_add_u32 v4, v4, 4, v6
v_mul_lo_u32 v5, v5, s42
v_add_u32 v{EO + j}, v5, v4
""")
    AV = 160

    def scale_exchange():
        a(f"ds_write_b32 v{EO + 2}, v{SC}")
        a(f"ds_write_b32 v{EO + 2}, v{SC + 1} offset:128")
        a("s_waitcnt lgkmcnt(0)")
        for i in range(2):
            for g in range(4):
                a(f"ds_read_b128 {vr(AV + 16 * i + 4 * g, 4)}, v{EO + 3} offset:{128 * i + 32 * g}")

    if not slow:
        fast_stats()
        rank1(a, "v", True)
    gen_mainloop(a, P, "v", slow, None if slow else scale_exchange)
    if slow:
        slow_stats("v")
        scale_exchange()
    a.stamp(5)
    a("s_waitcnt lgkmcnt(0)")
    n = 0
    for i in range(2):
        for j in range(2):
            for gp in range(2):
                t = 32 + 12 * (n % 2)
                n += 1
                for r in range(8):
                    a(f"v_mul_f32 v{t + r}, v{AV + 16 * i + 8 * gp + r}, v{ACC + (2 * i + j) * 16 + 8 * gp + r}")
                for r in range(4):
                    a(f"v_cvt_pk_bf16_f32 v{t + 8 + r}, v{t + 2 * r}, v{t + 2 * r + 1}")
                a(f"buffer_store_dwordx4 {vr(t + 8, 4)}, v{EO + j}, s[24:27], s{40 + i} offen offset:{640 * gp} {OPT.get('wt_v', WT)}")
    a.stamp(6)
    if a.prof == 1:
        a("s_waitcnt vmcnt(0)")
    a.stamp(7)
    a.dump(0, "s13")
    a("s_endpgm")

    if slow:
        gen_aux(a, P)


def gen_aux(a, P):
    a.label(f"{P}_aux")
    a(f"""
s_cmp_lg_u32 s11, 15
s_cbranch_scc1 {P}_end
""")
    a.label(f"{P}_aux_cnt")
    a("""
v_lshlrev_b32 v1, 4, v0
v_mov_b32 v4, 0
v_mov_b32 v5, 0
v_mov_b32 v6, 0
v_mov_b32 v7, 0
s_mov_b32 s54, 262144
s_mov_b32 s55, 0x20000
s_mov_b32 s29, 0
s_waitcnt lgkmcnt(0)
s_add_u32 s52, s8, 0xE60000
s_addc_u32 s53, s9, 0
""")
    a.label(f"{P}_aux_cl")
    a(f"""
buffer_store_dwordx4 v[4:7], v1, s[52:55], s29 offen
s_add_u32 s29, s29, 8192
s_cmp_lt_u32 s29, 262144
s_cbranch_scc1 {P}_aux_cl
s_endpgm
""")


def read_list(Fb, ks):
    return [f"ds_read_b128 {vr(Fb, 4)}, v{AA + ks}",
            f"ds_read_b64_tr_b16 {vr(Fb + 8, 2)}, v{AB} offset:{ks * 4096}",
            f"ds_read_b64_tr_b16 {vr(Fb + 10, 2)}, v{AB} offset:{ks * 4096 + 1024}",
            f"ds_read_b64_tr_b16 {vr(Fb + 12, 2)}, v{AB + 1} offset:{ks * 4096}",
            f"ds_read_b64_tr_b16 {vr(Fb + 14, 2)}, v{AB + 1} offset:{ks * 4096 + 1024}",
            f"ds_read_b128 {vr(Fb + 4, 4)}, v{AA + 4 + ks}"]


def gen_step(a, typ, Fb, slow, nxt, waits=True, mid=None):
    n = 0
    for i in range(2):
        for j in range(2):
            if waits and n < 3:
                a(f"s_waitcnt lgkmcnt({[3, 3, 4][n] if nxt else [3, 1, 0][n]})")
            acc = vr(ACC + (2 * i + j) * 16, 16)
            xa, wb = vr(Fb + 4 * i, 4), vr(Fb + 8 + 4 * j, 4)
            if typ == "qk":
                a(f"v_mfma_f32_32x32x16_bf16 {acc}, {wb}, {xa}, {acc}")
            else:
                a(f"v_mfma_f32_32x32x16_bf16 {acc}, {xa}, {wb}, {acc}")
            if mid and n == 0:
                mid()
            for r in nxt[2 * n:2 * n + 2]:
                a(r)
            if slow and not OPT.get('nostat'):
                a(f"v_lshlrev_b32 v54, 16, v{Fb + 8 + n}")
                a(f"v_and_b32 v55, 0xffff0000, v{Fb + 8 + n}")
                a(f"v_add_f32 v{ST + 4}, v{ST + 4}, v54")
                a(f"v_add_f32 v{ST + 5}, v{ST + 5}, v55")
            n += 1
    if slow and not OPT.get('nostat'):
        for r in range(4):
            a(f"v_dot2_f32_bf16 v{ST + r % 2}, v{Fb + r}, s36, v{ST + r % 2}")
            a(f"v_dot2_f32_bf16 v{ST + 2 + r % 2}, v{Fb + r}, v{Fb + r}, v{ST + 2 + r % 2}")


def gen_mainloop(a, P, typ, slow, before_last):
    if OPT.get("touch_late", 0):
        gen_touch(a)
    a.stamp(2)
    a("s_barrier")
    a.stamp(3)
    for r in read_list(F[0], 0):
        a(r)
    if OPT.get("touch3", 0):
        a(f"""
s_mov_b32 s16, s78
s_mov_b32 s17, s79
s_mov_b32 s18, 2457600
s_mov_b32 s20, s80
s_mov_b32 s21, s81
s_mov_b32 s22, 819200
s_mul_i32 s28, s11, 15
s_add_u32 s28, s28, s12
s_lshl_b32 s28, s28, 2
s_add_u32 s28, s28, s13
s_mul_i32 s29, s28, 896
s_mul_i32 s28, s28, 2560
v_lshlrev_b32 v4, 7, v0
s_mov_b64 exec, 0xfffff
buffer_load_dword v50, v4, s[16:19], s28 offen
s_mov_b64 exec, 0x7f
buffer_load_dword v52, v4, s[20:23], s29 offen
s_mov_b32 s20, s82
s_mov_b32 s21, s83
buffer_load_dword v53, v4, s[20:23], s29 offen
s_mov_b64 exec, -1
""")
    a.label(f"{P}_loop_{typ}")
    for ks in range(3):
        gen_step(a, typ, F[ks % 2], slow, read_list(F[(ks + 1) % 2], ks + 1))
    a(f"""
s_add_u32 s37, s37, 1
s_mov_b32 s39, 32768
s_cmp_eq_u32 s37, 5
s_cmov_b32 s39, {(-131072) & 0xffffffff}
""")
    for r in range(10):
        a(f"v_add_u32 v{AA + r}, s39, v{AA + r}")
    a(f"""
s_cmp_eq_u32 s37, 10
s_waitcnt lgkmcnt(0)
s_cbranch_scc1 {P}_last_{typ}
""")
    gen_step(a, typ, F[1], slow, read_list(F[0], 0), waits=False, mid=lambda: a("s_barrier"))
    a(f"s_branch {P}_loop_{typ}")
    a.label(f"{P}_last_{typ}")
    a.stamp(4)
    if before_last:
        before_last()
    gen_step(a, typ, F[1], slow, [], waits=False)
```
